```python
import torch

def _softmax(x, axis=-1):
    return torch.softmax(x, dim=axis)
def _gelu(x):
    return torch.nn.functional.gelu(x, approximate="tanh")
def _silu(x):
    return torch.nn.functional.silu(x)
def _sigmoid(x):
    return torch.sigmoid(x)
def _layernorm(x, axis=-1, eps=1e-5):
    m = x.mean(dim=axis, keepdim=True)
    v = x.var(dim=axis, keepdim=True, unbiased=False)
    return (x - m) / torch.sqrt(v + eps)
def _scatter_add(tgt, idx, src, axis=0):
    return tgt.clone().index_add_(axis, idx, src)
def _segment_sum(src, seg, n):
    out = torch.zeros((n,) + src.shape[1:], dtype=src.dtype)
    return out.index_add_(0, seg, src)
def _pad(x, pw):
    flat = tuple(v for pair in reversed(pw) for v in pair)
    return torch.nn.functional.pad(x, flat)

kernel_name = 'sequential_preLN__mha_block_cached__glu_gated_glu__decode'

def setup_inputs():

    _w = (lambda a: (lambda t: t.to(torch.bfloat16) if t.is_floating_point() else t)(torch.as_tensor(a)))
    def _A_setup():
        B, Sq, D = 2, 1, 640
        H, Sk, Dh = 32, 4096, 192
        return {
            "x": _w((lambda *s: torch.randn(*s, dtype=torch.bfloat16) * 0.05)(B, Sq, D)),
            "k_cache": _w((lambda *s: torch.randn(*s, dtype=torch.bfloat16) * 3.2)(B, H, Sk, Dh)),
            "v_cache": _w((lambda *s: torch.randn(*s, dtype=torch.bfloat16) * 0.4)(B, H, Sk, Dh)),
            "wq": _w((lambda *s: torch.randn(*s, dtype=torch.bfloat16) * 3.2)(D, H * Dh) * (D ** -0.5)),
            "wo": _w((lambda *s: torch.randn(*s, dtype=torch.bfloat16) * 0.4)(H * Dh, D) * ((H * Dh) ** -0.5)),
        }
    _A_in = _A_setup()

    def _B_setup():
        B, S, D, F = 2, 1, 640, 1536
        return {
            "x": _w((lambda *s: torch.randn(*s, dtype=torch.bfloat16) * 0.05)(B, S, D)),
            "w_gate": _w((lambda *s: torch.randn(*s, dtype=torch.bfloat16) * 0.1)(D, F)),
            "w_up": _w((lambda *s: torch.randn(*s, dtype=torch.bfloat16) * 0.05)(D, F)),
            "w_down": _w((lambda *s: torch.randn(*s, dtype=torch.bfloat16) * 0.05)(F, D)),
        }
    _B_in = _B_setup()

    return {
        "A_x": _A_in["x"],
        "A_k_cache": _A_in["k_cache"],
        "A_v_cache": _A_in["v_cache"],
        "A_wq": _A_in["wq"],
        "A_wo": _A_in["wo"],
        "B_x": _B_in["x"],
        "B_w_gate": _B_in["w_gate"],
        "B_w_up": _B_in["w_up"],
        "B_w_down": _B_in["w_down"],
    }

def reference(A_x, A_k_cache, A_v_cache, A_wq, A_wo, B_x, B_w_gate, B_w_up, B_w_down):
    def _A_ref(x, k_cache, v_cache, wq, wo):
        B, Sq, D = x.shape
        H, Dh = 32, 192
        q = (lambda x, *d: x.permute(*d))((x @ wq).reshape(B, Sq, H, Dh), 0, 2, 1, 3)
        scores = torch.einsum("bhqd,bhkd->bhqk", q, k_cache) * (Dh ** -0.5)
        p = _softmax(scores, axis=-1)
        o = torch.einsum("bhqk,bhkd->bhqd", p, v_cache)
        return (lambda x, *d: x.permute(*d))(o, 0, 2, 1, 3).reshape(B, Sq, H * Dh) @ wo

    def _B_ref(x, w_gate, w_up, w_down):
        g = torch.einsum("bsd,df->bsf", x, w_gate)
        u = torch.einsum("bsd,df->bsf", x, w_up)
        h = _sigmoid(g) * u
        return torch.einsum("bsf,fd->bsd", h, w_down)

    x = A_x
    h = x + _A_ref(_layernorm(x, axis=-1), A_k_cache, A_v_cache, A_wq, A_wo)
    h2 = h + _B_ref(_layernorm(h, axis=-1), B_w_gate, B_w_up, B_w_down)
    return h2
```

```python
import struct, sys
KN = "sequential_preLN__mha_block_cached__glu_gated_glu__decode_kernel"
HDR = open("sequential_preLN__mha_block_cached__glu_gated_glu__decode.s.ref").read().split("; Override")[0]

def f32(x): return "0x%08x" % struct.unpack("<I", struct.pack("<f", x))[0]

WS_QP = 0x000000
WS_CL = 0x080000
WS_OB = WS_CL
WS_ML = WS_OB + 98304
WS_YB = WS_ML + 2048
WS_HB = WS_YB + 20480
assert WS_HB + 6144 <= WS_CL + 131072
WS_DIAG = 0x200000
WS_WIN = 0x400000
OOB = 0x40000000
L_R = 0
L_QL = L_R + 12288
L_QB = L_QL + 3072
L_MX = L_QB + 1536
L_LS = L_MX + 16
L_T = L_LS + 16
L_W = (L_T + 6144 + 255) // 256 * 256
LDS_BYTES = L_W + 104448

class Asm:
    def __init__(s):
        s.L = []; s.vm = []
    def __call__(s, *lines):
        for x in lines: s.L.append("    " + x)
    def label(s, n): s.L.append(n + ":")
    def c(s, t): s.L.append("    ; " + t)
    def vmem(s, line, tag=None):
        s(line); s.vm.append(tag)
        assert len(s.vm) <= 63, "vmcnt overflow"
    def wait(s, tag):
        idx = [i for i, t in enumerate(s.vm) if t == tag]
        if not idx: return
        n = len(s.vm) - 1 - idx[-1]
        s(f"s_waitcnt vmcnt({n})")
        s.vm = s.vm[idx[-1]+1:]
    def waitall(s):
        s("s_waitcnt vmcnt(0)"); s.vm = []
    def execm(s, m):
        if m == (1 << 64) - 1: s("s_mov_b64 exec, -1")
        elif m <= 64: s(f"s_mov_b64 exec, {m}")
        else: s(f"s_mov_b32 exec_lo, {hex(m & 0xffffffff)}", f"s_mov_b32 exec_hi, {hex(m >> 32)}")

def vr(b, n): return f"v[{b}:{b+n-1}]"
ALL = (1 << 64) - 1
DPP = "row_mask:0xf bank_mask:0xf"

def gen(path, diag=False, RING=16, LAG=4, CATCH=3, rot=1, fl_ld=10, fl_chk=13, q_use=15, spin=1 << 22, psleep=0,
        roleA0=0, roleB0=80, roleC0=128):
    a = Asm()
    sW, sBH, sJ, sH, sB, sM8 = 3, 64, 65, 66, 67, 68
    sIT, sOFF, sT0, sT1, sT2, sT3, sCNT = 69, 70, 71, 72, 73, 74, 75
    sMu0, sMu1, sRs0, sRs1 = 76, 77, 78, 79
    sRole, sR, sC = 76, 77, 78
    rK, rV, rWQ, rX, rWS, rDBG, rW1, rW2, rOUT = 28, 32, 36, 40, 44, 48, 52, 56, 60
    def srd(r): return f"s[{r}:{r+3}]"
    def mksrd(r, p, n): a(f"s_mov_b32 s{r}, s{p}", f"s_mov_b32 s{r+1}, s{p+1}", f"s_mov_b32 s{r+2}, {n}", f"s_mov_b32 s{r+3}, 0x20000")
    nst = [0]
    def stamp(i):
        if diag: a(f"s_memrealtime s[{80+2*i}:{81+2*i}]")
    vL, vKV, vM = 1, 2, 3
    t = list(range(7, 20))
    vQ = 20; vS = 32; vRING = 64
    def ring(n): return vRING + 12 * (n % RING)
    T = 208

    a.label(KN)
    stamp(0)
    a("s_cmp_ge_u32 s2, 256", "s_cbranch_scc1 L_done")
    a("s_load_dwordx16 s[4:19], s[0:1], 0", "s_load_dwordx8 s[20:27], s[0:1], 64")
    a(f"v_lshrrev_b32 v{t[0]}, 6, v0", f"v_and_b32 v{vL}, 63, v0", f"v_readfirstlane_b32 s{sW}, v{t[0]}")
    a(f"s_and_b32 s{sBH}, s2, 63", f"s_lshr_b32 s{sJ}, s2, 6", f"s_and_b32 s{sH}, s2, 31", f"s_lshr_b32 s{sB}, s{sBH}, 5",
      f"s_lshl_b32 s{sM8}, s{sB}, 2", f"s_add_u32 s{sM8}, s{sM8}, s{sJ}")
    vK8, vC8 = t[1], t[2]
    a(f"v_lshrrev_b32 v{vK8}, 3, v{vL}", f"v_and_b32 v{vC8}, 7, v{vL}")
    a(f"v_mul_u32_u24 v{t[3]}, 40, v{vL}")
    a(f"s_mul_i32 s{sT0}, s{sM8}, 80", f"s_lshl_b32 s{sT1}, s{sW}, 3", f"s_add_u32 s{sT0}, s{sT0}, s{sT1}")
    a(f"v_add_u32 v{t[4]}, s{sT0}, v{vK8}")
    a(f"v_lshlrev_b32 v{t[5]}, 1, v{t[4]}")
    a(f"v_mul_u32_u24 v{t[6]}, 12288, v{t[4]}", f"v_lshl_add_u32 v{t[6]}, v{vC8}, 4, v{t[6]}")
    a(f"s_mul_i32 s{sT1}, s{sH}, 384", f"s_add_u32 s{sT2}, s{sT1}, {32*12288}")
    a(f"s_cmp_lt_u32 s{sW}, 2", f"s_cselect_b32 s{sT3}, {64*12288}, {OOB}")
    a(f"v_add_u32 v{t[7]}, s{sT3}, v{t[6]}")
    a(f"s_mul_i32 s{sT0}, s{sBH}, 1572864", f"s_lshl_b32 s{sT3}, s{sJ}, 2", f"s_add_u32 s{sT3}, s{sT3}, s{sW}",
      f"s_mul_i32 s{sT3}, s{sT3}, 3072", f"s_add_u32 s{sT0}, s{sT0}, s{sT3}")
    a(f"v_mul_u32_u24 v{vKV}, 384, v{vK8}", f"v_lshl_add_u32 v{vKV}, v{vC8}, 4, v{vKV}", f"v_add_u32 v{vKV}, s{sT0}, v{vKV}")
    if rot: a(f"s_mul_i32 s{sIT}, s{sBH}, {rot}", f"s_and_b32 s{sIT}, s{sIT}, 31")
    else: a(f"s_mov_b32 s{sIT}, 0")
    a("s_waitcnt lgkmcnt(0)")
    mksrd(rX, 4, 2560); mksrd(rWQ, 10, 640*12288)
    a.vmem(f"buffer_load_dwordx4 {vr(32,4)}, v{t[3]}, {srd(rX)}, 0 offen", "xs")
    a.vmem(f"buffer_load_dwordx4 {vr(36,4)}, v{t[3]}, {srd(rX)}, 0 offen offset:16", "xs")
    a.vmem(f"buffer_load_dwordx2 {vr(40,2)}, v{t[3]}, {srd(rX)}, 0 offen offset:32", "xs")
    for g in range(3):
        for i in range(3):
            vo, so = (t[6], sT1) if g == 0 else (t[6], sT2) if g == 1 else (t[7], sT1)
            a.vmem(f"buffer_load_dwordx4 a[{12*g+4*i}:{12*g+4*i+3}], v{vo}, {srd(rWQ)}, s{so} offen offset:{128*i} nt", f"wq{g}")
        if g == 0:
            for g2 in range(3):
                for b in range(2):
                    a.vmem(f"buffer_load_ushort v{42+2*g2+b}, v{t[5]}, {srd(rX)}, 0 offen offset:{b*1280+g2*64}", "xr")
    mksrd(rK, 6, 100663296); mksrd(rV, 8, 100663296); mksrd(rWS, 26, WS_WIN); mksrd(rDBG, 24, 256)

    issued = [0]
    def issue():
        n = issued[0]; issued[0] += 1
        r = ring(n); R = rK if n < 32 else rV
        a(f"s_mul_i32 s{sOFF}, s{sIT}, 49152")
        for i in range(3):
            a.vmem(f"buffer_load_dwordx4 {vr(r+4*i,4)}, v{vKV}, {srd(R)}, s{sOFF} offen offset:{128*i} nt", f"g{n}")
        if n < 63: a(f"s_add_u32 s{sIT}, s{sIT}, 1", f"s_and_b32 s{sIT}, s{sIT}, 31")
    issue()
    a(f"s_lshl_b32 s{sT0}, s2, 9", f"s_add_u32 s{sT0}, s{sT0}, {WS_CL}")
    a(f"v_lshl_add_u32 v{t[8]}, v0, 4, s{sT0}", f"v_cmp_gt_u32 vcc, 32, v0", f"v_mov_b32 v{t[9]}, {OOB}")
    for i in range(4): a(f"v_mov_b32 v{48+i}, -1")
    a(f"v_cndmask_b32 v{t[8]}, v{t[9]}, v{t[8]}, vcc")
    a.vmem(f"buffer_store_dwordx4 {vr(48,4)}, v{t[8]}, {srd(rWS)}, 0 offen sc1", "clr")
    a(f"v_and_b32 v{t[10]}, 1, v{vL}", f"v_lshlrev_b32 v{t[10]}, 4, v{t[10]}", f"v_mov_b32 v{t[11]}, 0xffff",
      f"v_lshlrev_b32 v{t[10]}, v{t[10]}, v{t[11]}", f"v_lshrrev_b32 v{t[11]}, 1, v{vC8}")
    for j in range(4):
        a(f"v_cmp_eq_u32 vcc, {j}, v{t[11]}", "s_nop 1", f"v_cndmask_b32 v{vM+j}, 0, v{t[10]}, vcc")
    a.wait("xs")
    stamp(1)
    for i in range(10):
        a(f"v_lshlrev_b32 v{T+2*i}, 16, v{32+i}", f"v_and_b32 v{T+2*i+1}, 0xffff0000, v{32+i}")
    x0, x1 = T + 20, T + 21
    a(f"v_add_f32 v{x0}, v{T}, v{T+1}", f"v_add_f32 v{x1}, v{T+2}, v{T+3}")
    for i in range(4, 20, 2): a(f"v_add_f32 v{x0}, v{x0}, v{T+i}", f"v_add_f32 v{x1}, v{x1}, v{T+i+1}")
    a(f"v_add_f32 v{x0}, v{x0}, v{x1}")
    def red32(x, y, op="add"):
        for d in ("quad_perm:[1,0,3,2]", "quad_perm:[2,3,0,1]", "row_half_mirror", "row_mirror"):
            a("s_nop 1", f"v_{op}_f32_dpp v{x}, v{x}, v{x} {d} {DPP}")
        a(f"v_mov_b32 v{y}, v{x}", "s_nop 1", f"v_permlane16_swap_b32 v{x}, v{y}", f"v_{op}_f32 v{x}, v{x}, v{y}")
    red32(x0, x1)
    mu = T + 22
    a(f"v_mul_f32 v{mu}, {f32(1/640)}, v{x0}")
    issue()
    for i in range(20): a(f"v_sub_f32 v{T+i}, v{T+i}, v{mu}")
    a(f"v_mul_f32 v{x0}, v{T}, v{T}", f"v_mul_f32 v{x1}, v{T+1}, v{T+1}")
    for i in range(2, 20, 2): a(f"v_fmac_f32 v{x0}, v{T+i}, v{T+i}", f"v_fmac_f32 v{x1}, v{T+i+1}, v{T+i+1}")
    a(f"v_add_f32 v{x0}, v{x0}, v{x1}")
    red32(x0, x1)
    a(f"v_mul_f32 v{x0}, {f32(1/640)}, v{x0}", f"v_cvt_pk_bf16_f32 v{x0}, 0, v{x0}", f"v_add_f32 v{x0}, {f32(1e-5)}, v{x0}",
      f"v_cvt_pk_bf16_f32 v{x0}, 0, v{x0}", f"v_sqrt_f32 v{x0}, v{x0}", f"v_cvt_pk_bf16_f32 v{mu}, 0, v{mu}",
      f"v_cvt_pk_bf16_f32 v{x0}, 0, v{x0}", f"v_rcp_f32 v{x0}, v{x0}",
      f"v_readlane_b32 s{sMu0}, v{mu}, 0", f"v_readlane_b32 s{sMu1}, v{mu}, 32",
      f"v_readlane_b32 s{sRs0}, v{x0}, 0", f"v_readlane_b32 s{sRs1}, v{x0}, 32")
    issue()
    a.wait("xr")
    for k in range(6): a(f"v_lshlrev_b32 v{42+k}, 16, v{42+k}")
    for k in range(6): a(f"v_subrev_f32 v{42+k}, s{sMu0+(k&1)}, v{42+k}")
    for k in range(6): a(f"v_cvt_pk_bf16_f32 v{42+k}, 0, v{42+k}")
    for k in range(6): a(f"v_mul_f32 v{42+k}, s{sRs0+(k&1)}, v{42+k}")
    for k in range(6): a(f"v_cvt_pk_bf16_f32 v{42+k}, v{42+k}, v{42+k}")
    for k in range(6):
        for j in range(4): a(f"v_and_b32 v{T+24+4*k+j}, v{42+k}, v{vM+j}")
    for g in range(3):
        a.wait(f"wq{g}")
        if g == 0: a("s_nop 0")
        for b in range(2):
            for i in range(3):
                d = vr(T+12*b+4*i, 4)
                a(f"v_mfma_f32_16x16x32_bf16 {d}, {vr(T+24+8*g+4*b,4)}, a[{12*g+4*i}:{12*g+4*i+3}], {'0' if g == 0 else d}")
    vDF = t[3]
    a(f"v_lshrrev_b32 v{t[4]}, 5, v{vL}", f"v_and_b32 v{vDF}, 16, v{vL}", f"v_lshl_add_u32 v{vDF}, v{vC8}, 5, v{vDF}")
    a(f"v_mul_u32_u24 v{t[5]}, 1536, v{t[4]}", f"s_mul_i32 s{sT0}, s{sW}, 3072", f"v_add3_u32 v{t[5]}, v{t[5]}, v{vDF}, s{sT0}")
    vOR = t[12]
    a(f"s_lshl_b32 s{sT0}, s{sW}, 11", f"v_lshl_add_u32 v{vOR}, v{t[4]}, 10, v{vDF}", f"v_add_u32 v{vOR}, s{sT0}, v{vOR}")
    VALID = 0xFF00FF0000FF00FF
    a.execm(VALID)
    for b in range(2):
        for i in range(3):
            a(f"ds_write_b128 v{t[5]}, {vr(T+12*b+4*i,4)} offset:{L_R + b*768 + i*256}")
    a.execm(ALL)
    issue()
    a("s_waitcnt lgkmcnt(0)", "s_barrier")
    a(f"v_lshlrev_b32 v{t[4]}, 4, v{vL}")
    a(f"s_cmp_lg_u32 s{sW}, 0", "s_cbranch_scc1 L_qnored")
    for b in range(2):
        base = 32 if b == 0 else T
        for k in range(8): a(f"ds_read_b128 {vr(base+4*k,4)}, v{t[4]} offset:{L_R + k*1536 + b*768}")
    for b in range(2):
        base = 32 if b == 0 else T
        a(f"s_waitcnt lgkmcnt({8 if b == 0 else 0})")
        for st in (16, 8, 4):
            for k in range(0, st, 2): a(f"v_pk_add_f32 {vr(base+k,2)}, {vr(base+k,2)}, {vr(base+k+st,2)}")
    a.label("L_qnored")
    a(f"s_lshl_b32 s{sT0}, s{sH}, 3", f"s_add_u32 s{sT0}, s{sT0}, s{sM8}", f"s_mul_i32 s{sT0}, s{sT0}, 1536")
    a(f"v_cmp_gt_u32 vcc, 48, v0", f"v_add_u32 v{t[4]}, s{sT0}, v{t[4]}", "s_nop 0", f"v_cndmask_b32 v{t[4]}, v{t[9]}, v{t[4]}, vcc")
    a.vmem(f"buffer_store_dwordx4 {vr(32,4)}, v{t[4]}, {srd(rWS)}, 0 offen offset:{WS_QP} sc1", "qst")
    a.vmem(f"buffer_store_dwordx4 {vr(T,4)}, v{t[4]}, {srd(rWS)}, 0 offen offset:{WS_QP+768} sc1", "qst")
    stamp(2)
    issue(); issue()
    a(f"v_cmp_eq_u32 vcc, 0, v0", f"v_mov_b32 v{t[4]}, s2", f"v_mov_b32 v{t[5]}, 1", f"v_cndmask_b32 v{t[4]}, v{t[9]}, v{t[4]}, vcc")
    a.wait("qst")
    a.vmem(f"buffer_store_byte v{t[5]}, v{t[4]}, {srd(rDBG)}, 0 offen sc1", "flag")
    stamp(3)
    while issued[0] <= fl_ld: issue()
    a(f"v_lshlrev_b32 v{t[4]}, 2, v{vL}")
    a.vmem(f"buffer_load_dword v{t[5]}, v{t[4]}, {srd(rDBG)}, 0 offen sc1", "fl")
    while issued[0] <= fl_chk: issue()
    a(f"s_lshl_b32 s{sT0}, s{sH}, 3", f"s_lshl_b32 s{sT1}, s{sW}, 1", f"s_add_u32 s{sT0}, s{sT0}, s{sT1}", f"s_mul_i32 s{sT0}, s{sT0}, 1536",
      f"s_mul_i32 s{sT1}, s{sB}, 768", f"s_add_u32 s{sT0}, s{sT0}, s{sT1}")
    a(f"v_cmp_gt_u32 vcc, 48, v{vL}", f"v_lshl_add_u32 v{t[6]}, v{vL}, 4, s{sT0}", f"s_mov_b32 s{sCNT}, 0", f"v_cndmask_b32 v{t[6]}, v{t[9]}, v{t[6]}, vcc")
    a.wait("fl")
    a(f"v_cmp_ne_u32 vcc, 0x01010101, v{t[5]}", "s_cbranch_vccz L_flok")
    a.label("L_flspin")
    a(f"buffer_load_dword v{t[5]}, v{t[4]}, {srd(rDBG)}, 0 offen sc1", f"s_add_u32 s{sCNT}, s{sCNT}, 1", "s_waitcnt vmcnt(0)",
      f"v_cmp_ne_u32 vcc, 0x01010101, v{t[5]}", "s_cbranch_vccz L_flok", f"s_cmp_lt_u32 s{sCNT}, {spin}", "s_cbranch_scc1 L_flspin")
    a.label("L_flok")
    if diag: a(f"s_mov_b32 s100, s{sCNT}")
    stamp(4)
    a.vmem(f"buffer_load_dwordx4 {vr(32,4)}, v{t[6]}, {srd(rWS)}, 0 offen offset:{WS_QP} sc1", "ql")
    a.vmem(f"buffer_load_dwordx4 {vr(36,4)}, v{t[6]}, {srd(rWS)}, 0 offen offset:{WS_QP+1536} sc1", "ql")
    while issued[0] <= q_use: issue()
    a(f"v_lshlrev_b32 v{t[4]}, 4, v{vL}", f"s_mul_i32 s{sT0}, s{sW}, 768", f"v_add_u32 v{t[5]}, s{sT0}, v{t[4]}")
    a(f"s_mul_i32 s{sT0}, s{sW}, 384", f"v_lshl_add_u32 v{t[6]}, v{vL}, 3, s{sT0}", f"v_lshl_add_u32 v{t[7]}, v{vC8}, 4, s{sT0}")
    a.wait("ql")
    a(f"v_pk_add_f32 {vr(32,2)}, {vr(32,2)}, {vr(36,2)}", f"v_pk_add_f32 {vr(34,2)}, {vr(34,2)}, {vr(38,2)}")
    a.execm((1 << 48) - 1)
    a(f"ds_write_b128 v{t[5]}, {vr(32,4)} offset:{L_QL}", "s_waitcnt lgkmcnt(0)", "s_barrier")
    for k in range(4): a(f"ds_read_b128 {vr(32+4*k,4)}, v{t[4]} offset:{L_QL + 768*k}")
    a("s_waitcnt lgkmcnt(0)")
    for st in (8, 4):
        for k in range(0, st, 2): a(f"v_pk_add_f32 {vr(32+k,2)}, {vr(32+k,2)}, {vr(32+k+st,2)}")
    a(f"v_cvt_pk_bf16_f32 v32, v32, v33", f"v_cvt_pk_bf16_f32 v33, v34, v35")
    a(f"ds_write_b64 v{t[6]}, {vr(32,2)} offset:{L_QB}")
    a.execm(ALL)
    a("s_waitcnt lgkmcnt(0)")
    for i in range(3): a(f"ds_read_b128 {vr(vQ+4*i,4)}, v{t[7]} offset:{L_QB + 128*i}")
    a(f"s_mov_b32 s{sT3}, {f32(192**-0.5)}")
    a("s_waitcnt lgkmcnt(0)")
    stamp(5)

    def post(n):
        s_ = vS + n
        return [f"v_add_f32_dpp v{s_}, v{s_}, v{s_} quad_perm:[1,0,3,2] {DPP}", f"v_add_f32_dpp v{s_}, v{s_}, v{s_} quad_perm:[2,3,0,1] {DPP}",
                f"v_add_f32_dpp v{s_}, v{s_}, v{s_} row_half_mirror {DPP}", f"v_cvt_pk_bf16_f32 v{s_}, 0, v{s_}",
                f"v_mul_f32 v{s_}, s{sT3}, v{s_}", f"v_cvt_pk_bf16_f32 v{s_}, 0, v{s_}"]
    def consumeK(n):
        a.wait(f"g{n}")
        r = ring(n); s_ = vS + n
        p = post(n-1) if n > 0 else []
        slots = {2: 0, 4: 1, 6: 2, 8: 3, 9: 4, 10: 5}
        for k in range(12):
            a(f"v_dot2_f32_bf16 v{s_}, v{r+k}, v{vQ+k}, {'0' if k == 0 else 'v%d' % s_}")
            if p and k in slots: a(p[slots[k]])
    cons = 0
    while cons < 32:
        lag = issued[0] - cons
        k = CATCH if lag > LAG + 1 else 1
        for _ in range(min(k, max(1, lag - LAG), 32 - cons)):
            consumeK(cons); cons += 1
        if issued[0] - cons < RING: issue()
    last = post(31)
    a("s_nop 2", last[0], "s_nop 1", last[1], "s_nop 1", *last[2:])
    stamp(6)
    m0, m1 = t[4], t[5]
    a(f"v_max3_f32 v{m0}, v{vS}, v{vS+1}, v{vS+2}", f"v_max3_f32 v{m1}, v{vS+3}, v{vS+4}, v{vS+5}")
    for k in range(6, 30, 4): a(f"v_max3_f32 v{m0}, v{m0}, v{vS+k}, v{vS+k+1}", f"v_max3_f32 v{m1}, v{m1}, v{vS+k+2}, v{vS+k+3}")
    a(f"v_max3_f32 v{m0}, v{m0}, v{vS+30}, v{vS+31}", f"v_max_f32 v{m0}, v{m0}, v{m1}")
    def redkeys(x, y, op):
        a("s_nop 1", f"v_{op}_f32_dpp v{x}, v{x}, v{x} row_ror:8 {DPP}")
        a(f"v_mov_b32 v{y}, v{x}", "s_nop 1", f"v_permlane16_swap_b32 v{x}, v{y}", f"v_{op}_f32 v{x}, v{x}, v{y}")
        a(f"v_mov_b32 v{y}, v{x}", "s_nop 1", f"v_permlane32_swap_b32 v{x}, v{y}", f"v_{op}_f32 v{x}, v{x}, v{y}")
    redkeys(m0, m1, "max")
    vW4, vZ = t[6], t[7]
    a(f"s_lshl_b32 s{sT0}, s{sW}, 2", f"v_mov_b32 v{vW4}, s{sT0}", f"v_mov_b32 v{vZ}, 0")
    a.execm(1)
    a(f"ds_write_b32 v{vW4}, v{m0} offset:{L_MX}")
    a.execm(ALL)
    issue()
    a("s_waitcnt lgkmcnt(0)", "s_barrier", f"ds_read_b128 {vr(vQ,4)}, v{vZ} offset:{L_MX}", f"s_mov_b32 s{sT3}, {f32(1.4426950408889634)}", "s_waitcnt lgkmcnt(0)")
    vMx, vLs = t[8], t[10]
    a(f"v_max3_f32 v{vMx}, v{vQ}, v{vQ+1}, v{vQ+2}", f"v_max_f32 v{vMx}, v{vMx}, v{vQ+3}", f"v_mul_f32 v{vMx}, s{sT3}, v{vMx}")
    for k0 in range(0, 32, 8):
        for k in range(k0, k0+8): a(f"v_fma_f32 v{vS+k}, v{vS+k}, s{sT3}, -v{vMx}")
        for k in range(k0, k0+8): a(f"v_exp_f32 v{vS+k}, v{vS+k}")
        for k in range(k0, k0+8, 2):
            if k == 0: a(f"v_mov_b32 v{vLs}, v{vS}", f"v_mov_b32 v{m1}, v{vS+1}")
            else: a(f"v_add_f32 v{vLs}, v{vLs}, v{vS+k}", f"v_add_f32 v{m1}, v{m1}, v{vS+k+1}")
        for k in range(k0, k0+8): a(f"v_cvt_pk_bf16_f32 v{vS+k}, v{vS+k}, v{vS+k}")
        if k0 == 8: issue()
    a(f"v_add_f32 v{vLs}, v{vLs}, v{m1}")
    redkeys(vLs, m1, "add")
    a.execm(1)
    a(f"ds_write_b32 v{vW4}, v{vLs} offset:{L_LS}")
    a.execm(ALL)
    vA = 8
    assert t[1] == 8
    vAcc = vQ
    def consumeV(n):
        for j in range(4): a(f"v_and_b32 v{vA+j}, v{vS+n-32}, v{vM+j}")
        a.wait(f"g{n}")
        a("s_nop 0")
        r = ring(n)
        for i in range(3):
            d = vr(vAcc+4*i, 4)
            a(f"v_mfma_f32_16x16x32_bf16 {d}, {vr(vA,4)}, {vr(r+4*i,4)}, {'0' if n == 32 else d}")
    while cons < 64:
        lag = issued[0] - cons
        k = CATCH if lag > LAG + 1 else 1
        for _ in range(min(k, max(1, lag - LAG), 64 - cons)):
            consumeV(cons); cons += 1
            if cons == 36:
                s0 = vS
                a("s_waitcnt lgkmcnt(0)", "s_barrier", f"ds_read_b128 {vr(s0,4)}, v{vZ} offset:{L_LS}")
                a(f"s_lshl_b32 s{sT0}, s{sH}, 6", f"s_lshl_b32 s{sT1}, s{sB}, 5", f"s_add_u32 s{sT0}, s{sT0}, s{sT1}",
                  f"s_lshl_b32 s{sT1}, s{sJ}, 2", f"s_add_u32 s{sT0}, s{sT0}, s{sT1}", f"s_add_u32 s{sT0}, s{sT0}, {WS_ML}")
                a(f"v_lshl_add_u32 v{m1}, v0, 4, s{sT0}", "v_cmp_gt_u32 vcc, 2, v0", "s_waitcnt lgkmcnt(0)",
                  f"v_add_f32 v{s0}, v{s0}, v{s0+1}", f"v_cndmask_b32 v{m1}, v{t[9]}, v{m1}, vcc", "v_cmp_eq_u32 vcc, 0, v0",
                  f"v_add_f32 v{s0+2}, v{s0+2}, v{s0+3}", f"v_add_f32 v{s0}, v{s0}, v{s0+2}", f"v_cndmask_b32 v{s0}, v{s0}, v{vMx}, vcc",
                  f"v_min_u32 v{s0}, -2, v{s0}")
                a.vmem(f"buffer_store_dword v{s0}, v{m1}, {srd(rWS)}, 0 offen sc1", "ml")
            if cons == 40:
                a(f"s_mul_i32 s{sT0}, s{sH}, 3072", f"s_lshl_b32 s{sT1}, s{sM8}, 6", f"s_add_u32 s{sT0}, s{sT0}, s{sT1}", f"s_add_u32 s{sT0}, s{sT0}, {WS_OB}")
                a(f"v_lshrrev_b32 v{m1}, 4, v0", f"v_and_b32 v{vW4}, 15, v0", f"v_lshlrev_b32 v{m1}, 9, v{m1}", f"v_lshl_add_u32 v{m1}, v{vW4}, 2, v{m1}",
                  f"v_cmp_gt_u32 vcc, 96, v0", f"v_add_u32 v{m1}, s{sT0}, v{m1}", f"v_lshlrev_b32 v{vW4}, 3, v0", f"v_cndmask_b32 v{m1}, v{t[9]}, v{m1}, vcc")
        if issued[0] < 64 and issued[0] - cons < RING: issue()
    stamp(7)
    a.execm(VALID)
    a("s_nop 3")
    for i in range(3): a(f"ds_write_b128 v{vOR}, {vr(vAcc+4*i,4)} offset:{L_R + i*256}")
    a.execm(ALL)
    a("s_waitcnt lgkmcnt(0)", "s_barrier")
    a(f"s_cmp_ge_u32 s{sW}, 2", "s_cbranch_scc1 L_onored")
    a(f"v_add_u32 v{vW4}, {L_R}, v{vW4}")
    for k in range(4): a(f"ds_read2st64_b64 {vr(32+4*k,4)}, v{vW4} offset0:{4*k} offset1:{4*k+2}")
    a("s_waitcnt lgkmcnt(2)", f"v_pk_add_f32 {vr(32,2)}, {vr(32,2)}, {vr(34,2)}", f"v_pk_add_f32 {vr(36,2)}, {vr(36,2)}, {vr(38,2)}",
      f"v_pk_add_f32 {vr(32,2)}, {vr(32,2)}, {vr(36,2)}",
      "s_waitcnt lgkmcnt(0)", f"v_pk_add_f32 {vr(40,2)}, {vr(40,2)}, {vr(42,2)}", f"v_pk_add_f32 {vr(44,2)}, {vr(44,2)}, {vr(46,2)}",
      f"v_pk_add_f32 {vr(32,2)}, {vr(32,2)}, {vr(40,2)}", f"v_pk_add_f32 {vr(32,2)}, {vr(32,2)}, {vr(44,2)}",
      f"v_cvt_pk_bf16_f32 v32, v32, v33", f"v_min_u32 v32, -2, v32",
      f"buffer_store_dword v32, v{m1}, {srd(rWS)}, 0 offen sc1")
    a.label("L_onored")
    stamp(8)
    a.vm = []
    vG, vRR, vCC, vN = 7, 8, 9, 10
    a(f"v_lshrrev_b32 v{vG}, 4, v{vL}", f"v_bfe_u32 v{vRR}, v{vL}, 2, 2", f"v_and_b32 v{vCC}, 3, v{vL}", f"v_and_b32 v{vN}, 15, v{vL}")
    a(f"s_sub_u32 s{sRole}, s2, {roleA0}", f"s_cmp_lt_u32 s{sRole}, 80", "s_cbranch_scc1 L_roleA")
    a(f"s_sub_u32 s{sRole}, s2, {roleB0}", f"s_cmp_lt_u32 s{sRole}, 48", "s_cbranch_scc1 L_roleB")
    a(f"s_sub_u32 s{sRole}, s2, {roleC0}", f"s_cmp_lt_u32 s{sRole}, 40", "s_cbranch_scc1 L_roleC")
    a("s_branch L_end")
    HALF = 0x00FF00FF00FF00FF
    LO32 = 0xFFFFFFFF
    pc = [0]
    def poll(loads, regs, mask):
        pc[0] += 1; k = pc[0]
        a(f"s_mov_b32 s{sCNT}, 0")
        a.execm(mask)
        a.label(f"L_poll{k}")
        for x in loads: a(x)
        a(f"s_add_u32 s{sCNT}, s{sCNT}, 1")
        x0_, x1_ = 11, 12
        nl = len(loads); per = len(regs) // nl
        first = True
        for i in range(nl):
            a(f"s_waitcnt vmcnt({nl-1-i})")
            rs = regs[i*per:(i+1)*per]
            if first: a(f"v_max3_u32 v{x0_}, v{rs[0]}, v{rs[1]}, v{rs[2]}", f"v_max_u32 v{x0_}, v{x0_}, v{rs[3]}"); first = False
            else: a(f"v_max3_u32 v{x0_}, v{x0_}, v{rs[0]}, v{rs[1]}", f"v_max3_u32 v{x0_}, v{x0_}, v{rs[2]}, v{rs[3]}")
        a(f"v_cmp_eq_u32 vcc, -1, v{x0_}", f"s_cbranch_vccz L_pok{k}", "s_mov_b64 exec, vcc")
        if psleep: a(f"s_sleep {psleep}")
        a(f"s_cmp_lt_u32 s{sCNT}, {spin}", f"s_cbranch_scc1 L_poll{k}")
        a.label(f"L_pok{k}")
        a.execm(ALL)
    W = 64
    a.label("L_roleA")
    a(f"s_and_b32 s{sR}, s{sRole}, 7", f"s_lshr_b32 s{sC}, s{sRole}, 3")
    mksrd(rW1, 12, 6144*1280)
    a(f"s_lshl_b32 s{sH}, s{sR}, 2", f"s_add_u32 s{sH}, s{sH}, s{sW}")
    a(f"v_lshrrev_b32 v11, 3, v{vL}", f"v_mul_u32_u24 v11, 1280, v11", f"v_and_b32 v12, 1, v{vG}", f"v_lshlrev_b32 v12, 1, v12",
      f"v_and_b32 v13, 7, v{vL}", f"v_xor_b32 v12, v12, v13", f"v_lshl_add_u32 v11, v12, 4, v11")
    a(f"s_mul_i32 s{sOFF}, s{sH}, {192*1280}", f"s_lshl_b32 s{sT0}, s{sC}, 7", f"s_add_u32 s{sOFF}, s{sOFF}, s{sT0}", f"s_mul_i32 s{sT1}, s{sW}, 26112", f"s_add_u32 s{sT1}, s{sT1}, {L_W}",
      f"s_mov_b32 s{sT2}, s{sT1}")
    for q in range(24):
        a(f"s_mov_b32 m0, s{sT2}", f"s_add_u32 s{sT2}, s{sT2}, 1088", f"buffer_load_dwordx4 v11, {srd(rW1)}, s{sOFF} offen nt lds", f"s_add_u32 s{sOFF}, s{sOFF}, {8*1280}")
    a(f"s_cmp_eq_u32 s{sR}, 0", f"s_cselect_b32 s{sT0}, s{sT0}, {OOB}")
    a(f"v_lshrrev_b32 v14, 5, v{vL}", f"v_and_b32 v15, 31, v{vL}", f"v_mul_u32_u24 v16, 1280, v14", f"v_lshl_add_u32 v16, v15, 2, v16", f"v_add_u32 v16, s{sT0}, v16")
    a(f"buffer_load_dword v19, v16, {srd(rX)}, 0 offen")
    a(f"s_lshl_b32 s{sT0}, s{sC}, 11", f"s_lshl_b32 s{sT2}, s{sR}, 7", f"s_add_u32 s{sT0}, s{sT0}, s{sT2}", f"s_add_u32 s{sT0}, s{sT0}, {WS_YB}")
    a(f"v_and_b32 v15, 1, v{vG}", f"v_lshlrev_b32 v15, 10, v15", f"v_lshl_add_u32 v15, v14, 6, v15", f"v_lshl_add_u32 v15, v{vN}, 2, v15", f"v_add_u32 v16, s{sT0}, v15")
    a(f"v_lshlrev_b32 v17, 3, v{vL}", f"v_add_u32 v17, {L_T}, v17")
    a(f"s_lshl_b32 s{sT0}, s{sH}, 6", f"s_add_u32 s{sT0}, s{sT0}, {WS_ML}", f"v_and_b32 v13, 1, v{vG}", f"v_lshl_add_u32 v13, v13, 5, s{sT0}")
    poll([f"buffer_load_dwordx4 {vr(20,4)}, v13, {srd(rWS)}, 0 offen sc1", f"buffer_load_dwordx4 {vr(24,4)}, v13, {srd(rWS)}, 0 offen offset:16 sc1"], list(range(20, 28)), ALL)
    a("v_max3_f32 v28, v20, v21, v22", "v_max_f32 v28, v28, v23")
    for j in range(4): a(f"v_sub_f32 v{20+j}, v{20+j}, v28")
    for j in range(4): a(f"v_exp_f32 v{20+j}, v{20+j}")
    a("s_nop 0", "v_mul_f32 v28, v20, v24", "v_fmac_f32 v28, v21, v25", "v_fmac_f32 v28, v22, v26", "v_fmac_f32 v28, v23, v27", "v_rcp_f32 v28, v28", "s_nop 0")
    for j in range(4): a(f"v_mul_f32 v{20+j}, v{20+j}, v28")
    a("v_lshlrev_b32 v18, 16, v19", "v_and_b32 v19, 0xffff0000, v19")
    a(f"v_mul_u32_u24 v11, 1088, v{vG}", f"v_lshl_add_u32 v11, v{vRR}, 7, v11", f"v_lshl_add_u32 v11, v{vCC}, 3, v11", f"v_add_u32 v11, s{sT1}, v11",
      f"v_lshrrev_b32 v12, 1, v{vRR}", f"v_lshl_add_u32 v13, v12, 5, v11", f"v_xor_b32 v12, 1, v12", f"v_lshl_add_u32 v14, v12, 5, v11")
    for tt in range(6):
        for tile in range(4):
            for hf in range(2):
                a(f"ds_read_b64_tr_b16 {vr(W+16*tt+4*tile+2*hf,2)}, v{13+(tile&1)} offset:{tt*4352 + hf*512 + (tile>>1)*64}")
    a(f"s_mul_i32 s{sT0}, s{sH}, 3072", f"s_add_u32 s{sT0}, s{sT0}, {WS_OB}", f"v_and_b32 v13, 7, v{vL}", f"v_lshlrev_b32 v13, 6, v13",
      f"v_lshl_add_u32 v13, v{vG}, 4, v13", f"v_add_u32 v13, s{sT0}, v13")
    a(f"s_lshl_b32 s{sT0}, s{sW}, 9", f"s_add_u32 s{sT0}, s{sT0}, {L_T}", f"v_lshlrev_b32 v15, 8, v{vG}", f"v_lshl_add_u32 v15, v{vN}, 2, v15", f"v_add_u32 v15, s{sT0}, v15")
    for k in range(24): a(f"v_mov_b32 v{32+k}, 0")
    a("s_waitcnt lgkmcnt(0)")
    stamp(9)
    poll([f"buffer_load_dwordx4 {vr(32+4*tt,4)}, v13, {srd(rWS)}, 0 offen offset:{tt*512} sc1" for tt in range(6)], list(range(32, 56)), HALF)
    if diag: a("s_memrealtime s[82:83]")
    D = 160
    def epiA(tile):
        d = D + 4*tile
        return [f"v_mul_f32 v{d}, v{d}, v20", f"v_fmac_f32 v{d}, v{d+1}, v21", f"v_fmac_f32 v{d}, v{d+2}, v22", f"v_fmac_f32 v{d}, v{d+3}, v23"]
    for tile in range(4):
        for tt in range(6):
            d = vr(D+4*tile, 4)
            a(f"v_mfma_f32_16x16x32_bf16 {d}, {vr(32+4*tt,4)}, {vr(W+16*tt+4*tile,4)}, {'0' if tt == 0 else d}")
            if tile >= 2 and tt >= 2: a(epiA(tile-2)[tt-2])
    a.execm(LO32)
    a(*epiA(2))
    a(f"ds_write2_b32 v15, v{D}, v{D+4} offset0:0 offset1:16", "s_nop 0")
    a(*epiA(3))
    a(f"ds_write2_b32 v15, v{D+8}, v{D+12} offset0:32 offset1:48")
    a.execm(ALL)
    a("s_waitcnt lgkmcnt(0)", "s_barrier")
    a(f"s_cmp_lg_u32 s{sW}, 0", "s_cbranch_scc1 L_end")
    a(f"ds_read2st64_b64 {vr(32,4)}, v17 offset0:0 offset1:1", f"ds_read2st64_b64 {vr(36,4)}, v17 offset0:2 offset1:3")
    a("s_waitcnt lgkmcnt(1)", f"v_pk_add_f32 {vr(32,2)}, {vr(32,2)}, {vr(34,2)}", f"v_pk_add_f32 {vr(32,2)}, {vr(32,2)}, {vr(18,2)}",
      "s_waitcnt lgkmcnt(0)", f"v_pk_add_f32 {vr(36,2)}, {vr(36,2)}, {vr(38,2)}", f"v_pk_add_f32 {vr(32,2)}, {vr(32,2)}, {vr(36,2)}",
      "v_cvt_pk_bf16_f32 v32, v32, v33", "v_min_u32 v32, -2, v32", f"buffer_store_dword v32, v16, {srd(rWS)}, 0 offen sc1")
    a("s_branch L_end")

    a.label("L_roleB")
    mksrd(rW1, 16, 640*3072); mksrd(rW2, 18, 640*3072)
    a(f"v_lshrrev_b32 v11, 2, v{vL}", f"v_mul_u32_u24 v11, 3072, v11", f"v_lshrrev_b32 v12, 5, v{vL}", f"v_lshlrev_b32 v12, 1, v12",
      f"v_xor_b32 v12, v12, v{vCC}", f"v_lshl_add_u32 v11, v12, 4, v11")
    a(f"s_mul_i32 s{sOFF}, s{sW}, {160*3072}", f"s_lshl_b32 s{sT0}, s{sRole}, 6", f"s_add_u32 s{sOFF}, s{sOFF}, s{sT0}", f"s_mul_i32 s{sT1}, s{sW}, 20480", f"s_add_u32 s{sT1}, s{sT1}, {L_W}",
      f"s_mov_b32 s{sT2}, s{sT1}")
    for q in range(10):
        a(f"s_mov_b32 m0, s{sT2}", f"s_add_u32 s{sT3}, s{sT2}, 10240", f"buffer_load_dwordx4 v11, {srd(rW1)}, s{sOFF} offen nt lds",
          f"s_mov_b32 m0, s{sT3}", f"s_add_u32 s{sT2}, s{sT2}, 1024", f"buffer_load_dwordx4 v11, {srd(rW2)}, s{sOFF} offen nt lds",
          f"s_add_u32 s{sOFF}, s{sOFF}, {16*3072}")
    a(f"v_lshlrev_b32 v11, 9, v{vG}", f"v_lshl_add_u32 v11, v{vRR}, 6, v11", f"v_lshl_add_u32 v11, v{vCC}, 3, v11", f"v_add_u32 v11, s{sT1}, v11",
      f"v_and_b32 v12, 1, v{vG}", f"v_lshl_add_u32 v13, v12, 5, v11", f"v_xor_b32 v12, 1, v12", f"v_lshl_add_u32 v14, v12, 5, v11")
    ONE = 20
    for j in range(4): a(f"v_mov_b32 v{ONE+j}, 0x3f803f80")
    a("s_waitcnt vmcnt(0)")
    for tt in range(5):
        for tile in range(4):
            for hf in range(2):
                a(f"ds_read_b64_tr_b16 {vr(W+16*tt+4*tile+2*hf,2)}, v{13+(tile&1)} offset:{(tile>>1)*10240 + tt*2048 + hf*256}")
    a(f"s_mul_i32 s{sT0}, s{sW}, 5120", f"s_add_u32 s{sT0}, s{sT0}, {WS_YB}", f"v_and_b32 v15, 7, v{vL}", f"v_lshlrev_b32 v15, 7, v15",
      f"v_bfe_u32 v16, v{vL}, 3, 1", f"v_lshl_add_u32 v15, v16, 6, v15", f"v_lshl_add_u32 v15, v{vG}, 4, v15", f"v_add_u32 v15, s{sT0}, v15")
    a(f"s_lshl_b32 s{sT0}, s{sW}, 10", f"v_lshlrev_b32 v17, 4, v{vL}", f"v_add_u32 v17, {L_T}, v17", f"v_add_u32 v16, s{sT0}, v17")
    a(f"s_lshl_b32 s{sT0}, s{sRole}, 7", f"s_add_u32 s{sT0}, s{sT0}, {WS_HB}", f"v_lshl_add_u32 v18, v{vL}, 1, s{sT0}")
    a(f"s_mov_b32 s{sT3}, 4096", "s_waitcnt lgkmcnt(0)")
    for tile in range(4):
        for tt in range(5):
            d = vr(D+4*tile, 4)
            a(f"v_mfma_f32_16x16x32_bf16 {d}, {vr(ONE,4)}, {vr(W+16*tt+4*tile,4)}, {'0' if tt == 0 else d}")
    a(f"v_and_b32 v12, 1, v{vG}", "v_cmp_eq_u32 vcc, 1, v12", "s_nop 7",
      f"v_cndmask_b32 v24, v{D}, v{D+4}, vcc", f"v_cndmask_b32 v25, v{D+8}, v{D+12}, vcc")
    a(f"ds_write_b64 v16, {vr(24,2)}", "s_waitcnt lgkmcnt(0)", "s_barrier")
    for k in range(4): a(f"ds_read_b64 {vr(24+2*k,2)}, v17 offset:{1024*k}")
    a("s_waitcnt lgkmcnt(0)", f"v_pk_add_f32 {vr(24,2)}, {vr(24,2)}, {vr(26,2)}", f"v_pk_add_f32 {vr(28,2)}, {vr(28,2)}, {vr(30,2)}",
      f"v_pk_add_f32 {vr(24,2)}, {vr(24,2)}, {vr(28,2)}", "s_barrier")
    a(f"v_lshrrev_b32 v11, 5, v{vL}", f"v_bfe_u32 v12, v{vL}, 3, 1", "v_cmp_eq_u32 vcc, v11, v12", "s_nop 1", "v_cndmask_b32 v19, 0, -1, vcc")
    stamp(9)
    poll([f"buffer_load_dwordx4 {vr(32+4*tt,4)}, v15, {srd(rWS)}, {'0' if tt < 4 else 's%d' % sT3} offen offset:{(tt&3)*1024} sc1" for tt in range(5)],
         list(range(32, 52)), ALL)
    if diag: a("s_memrealtime s[82:83]")
    G2, G1 = 176, 180
    for tt in range(5): a(f"v_mfma_f32_16x16x32_bf16 {vr(G2,4)}, {vr(32+4*tt,4)}, {vr(32+4*tt,4)}, {'0' if tt == 0 else vr(G2,4)}")
    for tt in range(5): a(f"v_mfma_f32_16x16x32_bf16 {vr(G1,4)}, {vr(32+4*tt,4)}, {vr(ONE,4)}, {'0' if tt == 0 else vr(G1,4)}")
    side = [None, None, None,
            [f"v_add_f32 v31, v{G2}, v{G2+1}", f"v_add_f32 v11, v{G2+2}, v{G2+3}"],
            [f"v_add_f32 v31, v31, v11", f"v_and_b32 v31, v31, v19"],
            [f"s_nop 0"],
            [f"v_add_f32_dpp v31, v31, v31 quad_perm:[1,0,3,2] {DPP}", f"v_add_f32 v30, v{G1}, v{G1+1}"],
            [f"v_add_f32_dpp v31, v31, v31 quad_perm:[2,3,0,1] {DPP}", f"v_add_f32 v11, v{G1+2}, v{G1+3}"],
            [f"v_add_f32_dpp v31, v31, v31 row_half_mirror {DPP}", f"v_add_f32 v30, v30, v11"],
            [f"v_add_f32_dpp v31, v31, v31 row_ror:8 {DPP}", f"v_mov_b32 v11, v30"],
            [f"v_mov_b32 v12, v31", f"v_add_f32 v{D}, v{D}, v{D+1}"],
            [f"v_permlane16_swap_b32 v30, v11", f"v_permlane16_swap_b32 v31, v12"],
            [f"v_add_f32 v30, v30, v11", f"v_add_f32 v31, v31, v12"],
            [f"v_add_f32 v{D+2}, v{D+2}, v{D+3}", f"v_add_f32 v{D}, v{D}, v{D+2}"],
            [f"v_add_f32 v{D+4}, v{D+4}, v{D+5}", f"v_add_f32 v{D+6}, v{D+6}, v{D+7}"],
            [f"v_add_f32 v{D+4}, v{D+4}, v{D+6}"],
            ["s_nop 0"],
            [f"v_permlane16_swap_b32 v{D}, v{D+4}", f"v_add_f32 v28, v{D}, v{D+4}"],
            None,
            [f"v_add_f32 v{D+8}, v{D+8}, v{D+9}", f"v_add_f32 v{D+10}, v{D+10}, v{D+11}", f"v_add_f32 v{D+8}, v{D+8}, v{D+10}"]]
    k = 0
    for tile in range(4):
        for tt in range(5):
            d = vr(D+4*tile, 4)
            a(f"v_mfma_f32_16x16x32_bf16 {d}, {vr(32+4*tt,4)}, {vr(W+16*tt+4*tile,4)}, {'0' if tt == 0 else d}")
            if side[k]: a(*side[k])
            k += 1
    a("s_nop 4", f"v_add_f32 v{D+12}, v{D+12}, v{D+13}", f"v_add_f32 v{D+14}, v{D+14}, v{D+15}", f"v_add_f32 v{D+12}, v{D+12}, v{D+14}", "s_nop 1",
      f"v_permlane16_swap_b32 v{D+8}, v{D+12}", f"v_add_f32 v29, v{D+8}, v{D+12}")
    a(f"ds_write_b128 v16, {vr(28,4)}", "s_waitcnt lgkmcnt(0)", "s_barrier")
    a(f"s_cmp_lg_u32 s{sW}, 0", "s_cbranch_scc1 L_end")
    for k in range(1, 4): a(f"ds_read_b128 {vr(28+4*k,4)}, v17 offset:{1024*k}")
    a("s_waitcnt lgkmcnt(2)", f"v_pk_add_f32 {vr(30,2)}, {vr(30,2)}, {vr(34,2)}", f"v_pk_add_f32 {vr(28,2)}, {vr(28,2)}, {vr(32,2)}",
      "s_waitcnt lgkmcnt(0)", f"v_pk_add_f32 {vr(38,2)}, {vr(38,2)}, {vr(42,2)}", f"v_pk_add_f32 {vr(36,2)}, {vr(36,2)}, {vr(40,2)}",
      f"v_pk_add_f32 {vr(30,2)}, {vr(30,2)}, {vr(38,2)}", f"v_pk_add_f32 {vr(28,2)}, {vr(28,2)}, {vr(36,2)}")
    a(f"v_mul_f32 v30, {f32(1/640)}, v30", f"v_mul_f32 v31, {f32(1/640)}, v31", "v_fma_f32 v31, -v30, v30, v31", "v_max_f32 v31, 0, v31",
      f"v_add_f32 v31, {f32(1e-5)}, v31", "v_rsq_f32 v31, v31", "v_fma_f32 v28, -v30, v24, v28", "v_fma_f32 v29, -v30, v25, v29",
      f"v_mul_f32 v28, {f32(-1.4426950408889634)}, v28", "v_mul_f32 v28, v28, v31", "v_exp_f32 v28, v28", "v_mul_f32 v29, v29, v31",
      "v_add_f32 v28, 1.0, v28", "v_rcp_f32 v28, v28", "s_nop 0", "v_mul_f32 v28, v28, v29", "s_nop 1",
      f"v_mov_b32_dpp v29, v28 quad_perm:[1,0,3,2] {DPP}")
    a.execm(0x5555555555555555)
    a("v_cvt_pk_bf16_f32 v28, v28, v29", "v_min_u32 v28, -2, v28", f"buffer_store_dword v28, v18, {srd(rWS)}, 0 offen sc1")
    a("s_branch L_end")

    a.label("L_roleC")
    mksrd(rW1, 20, 1536*1280); mksrd(rOUT, 22, 2560)
    a(f"v_lshrrev_b32 v11, 1, v{vL}", "v_and_b32 v12, 0x13, v11", f"v_bfe_u32 v13, v11, 2, 1", "v_lshl_add_u32 v12, v13, 3, v12",
      f"v_bfe_u32 v13, v11, 3, 1", "v_lshl_add_u32 v12, v13, 2, v12", "v_mul_u32_u24 v11, 1280, v12", f"v_and_b32 v12, 1, v{vL}", "v_lshl_add_u32 v11, v12, 4, v11")
    a(f"s_mul_i32 s{sOFF}, s{sW}, {384*1280}", f"s_lshl_b32 s{sT0}, s{sRole}, 5", f"s_add_u32 s{sOFF}, s{sOFF}, s{sT0}", f"s_mul_i32 s{sT1}, s{sW}, 12288", f"s_add_u32 s{sT1}, s{sT1}, {L_W}",
      f"s_mov_b32 s{sT2}, s{sT1}")
    for q in range(12):
        a(f"s_mov_b32 m0, s{sT2}", f"s_add_u32 s{sT2}, s{sT2}, 1024", f"buffer_load_dwordx4 v11, {srd(rW1)}, s{sOFF} offen nt lds", f"s_add_u32 s{sOFF}, s{sOFF}, {32*1280}")
    a(f"v_and_b32 v12, 1, v{vG}", f"v_lshl_add_u32 v11, v12, 2, v{vRR}", f"v_lshrrev_b32 v12, 1, v{vG}", "v_lshl_add_u32 v11, v12, 4, v11",
      "v_lshlrev_b32 v11, 5, v11", f"v_lshl_add_u32 v11, v{vCC}, 3, v11", f"v_add_u32 v13, s{sT1}, v11")
    a(f"v_bfe_u32 v11, v{vL}, 3, 1", "v_mul_u32_u24 v11, 1280, v11", f"v_and_b32 v12, 7, v{vL}", "v_lshl_add_u32 v11, v12, 2, v11", f"v_add_u32 v18, s{sT0}, v11")
    a(f"v_lshlrev_b32 v14, 7, v{vCC}", f"v_and_b32 v12, 1, v{vRR}", "v_lshl_add_u32 v14, v12, 6, v14", f"v_lshl_add_u32 v14, v{vG}, 4, v14")
    a(f"s_mul_i32 s{sT0}, s{sW}, 1536", f"s_add_u32 s{sT0}, s{sT0}, {WS_HB}", f"v_add_u32 v15, s{sT0}, v14")
    a(f"s_lshr_b32 s{sT0}, s{sRole}, 1", f"s_lshl_b32 s{sT0}, s{sT0}, 10", f"s_lshl_b32 s{sT2}, s{sW}, 9", f"s_add_u32 s{sT0}, s{sT0}, s{sT2}",
      f"s_add_u32 s{sT0}, s{sT0}, {WS_YB}", f"v_add_u32 v14, s{sT0}, v14")
    a(f"s_lshl_b32 s{sT0}, s{sW}, 7", f"s_add_u32 s{sT0}, s{sT0}, {L_T}", f"v_lshl_add_u32 v16, v{vL}, 2, s{sT0}", f"v_lshlrev_b32 v17, 3, v{vL}", f"v_add_u32 v17, {L_T}, v17")
    a(f"s_and_b32 s{sT0}, s{sRole}, 1", f"s_lshl_b32 s{sT0}, s{sT0}, 1", f"v_bfe_u32 v11, v{vL}, 3, 1", f"v_add_u32 v11, s{sT0}, v11",
      f"v_cmp_eq_u32 vcc, v11, v{vG}", "v_mov_b32 v12, 0x3f803f80", "s_nop 0", "v_cndmask_b32 v12, 0, v12, vcc")
    for j in range(4): a(f"v_and_b32 v{20+j}, v12, v{vM+j}")
    for k in range(12): a(f"v_mov_b32 v{32+k}, 0")
    a("v_mov_b32 v19, 0")
    a("s_waitcnt vmcnt(0)")
    for q in range(12):
        for hf in range(2): a(f"ds_read_b64_tr_b16 {vr(W+4*q+2*hf,2)}, v13 offset:{q*1024 + hf*256}")
    a("s_waitcnt lgkmcnt(0)")
    stamp(9)
    a(f"s_cmp_ge_u32 s{sW}, 2", "s_cbranch_scc1 L_cnores")
    poll([f"buffer_load_dwordx4 {vr(32,4)}, v14, {srd(rWS)}, 0 offen sc1"], list(range(32, 36)), HALF)
    a(f"v_mfma_f32_16x16x32_bf16 {vr(D,4)}, {vr(32,4)}, {vr(20,4)}, 0", "s_nop 7",
      f"v_add_f32 v19, v{D}, v{D+1}", f"v_add_f32 v11, v{D+2}, v{D+3}", "v_add_f32 v19, v19, v11")
    a.label("L_cnores")
    poll([f"buffer_load_dwordx4 {vr(32+4*ld,4)}, v15, {srd(rWS)}, 0 offen offset:{ld*512} sc1" for ld in range(3)], list(range(32, 44)), HALF)
    if diag: a("s_memrealtime s[82:83]")
    for ld in range(3):
        for s_ in range(4):
            d = vr(D+4*s_, 4)
            a(f"v_mfma_f32_16x16x32_bf16 {d}, {vr(32+4*ld,4)}, {vr(W+16*ld+4*s_,4)}, {'0' if ld == 0 else d}")
    a.execm(LO32)
    a("s_nop 2", f"v_add_f32 v19, v19, v{D}", f"v_add_f32 v19, v19, v{D+5}", f"v_add_f32 v19, v19, v{D+10}", f"v_add_f32 v19, v19, v{D+15}")
    a("ds_write_b32 v16, v19")
    a.execm(ALL)
    a("s_waitcnt lgkmcnt(0)", "s_barrier")
    a(f"s_cmp_lg_u32 s{sW}, 0", "s_cbranch_scc1 L_end")
    a.execm(0xFFFF)
    a(f"ds_read2_b64 {vr(32,4)}, v17 offset0:0 offset1:16", f"ds_read2_b64 {vr(36,4)}, v17 offset0:32 offset1:48")
    a("s_waitcnt lgkmcnt(1)", f"v_pk_add_f32 {vr(32,2)}, {vr(32,2)}, {vr(34,2)}",
      "s_waitcnt lgkmcnt(0)", f"v_pk_add_f32 {vr(36,2)}, {vr(36,2)}, {vr(38,2)}", f"v_pk_add_f32 {vr(32,2)}, {vr(32,2)}, {vr(36,2)}",
      "v_cvt_pk_bf16_f32 v32, v32, v33", f"buffer_store_dword v32, v18, {srd(rOUT)}, 0 offen")
    a.label("L_end")
    if diag:
        a("s_memrealtime s[4:5]", "s_waitcnt vmcnt(0)", "s_memrealtime s[6:7]", "s_getreg_b32 s101, hwreg(HW_REG_XCC_ID)", "s_waitcnt lgkmcnt(0)")
        a("s_mov_b64 exec, 1", f"s_lshl_b32 s{sT0}, s2, 2", f"s_add_u32 s{sT0}, s{sT0}, s{sW}", f"s_lshl_b32 s{sT0}, s{sT0}, 6", f"s_add_u32 s{sT0}, s{sT0}, {WS_DIAG}",
          f"v_mov_b32 v7, s{sT0}")
        src = [80+2*i for i in range(10)] + [4, 6, 100, 101, sCNT, sCNT]
        for k in range(16): a(f"v_mov_b32 v{32+k}, s{src[k]}")
        for k in range(4): a(f"buffer_store_dwordx4 {vr(32+4*k,4)}, v7, {srd(rWS)}, 0 offen offset:{16*k}")
    a.label("L_done")
    a("s_endpgm")

    out = HDR + f"; @launch grid=(256,1,1) block=(256,1,1) lds={LDS_BYTES}\n"
    out += '.amdgcn_target "amdgcn-amd-amdhsa--gfx950"\n.text\n' + f".globl {KN}\n.p2align 8\n.type {KN},@function\n"
    out += "\n".join(a.L) + "\n"
    out += f""".section .rodata,"a"
.p2align 6
.amdhsa_kernel {KN}
  .amdhsa_next_free_vgpr 296
  .amdhsa_next_free_sgpr 102
  .amdhsa_accum_offset 256
  .amdhsa_group_segment_fixed_size 0
  .amdhsa_kernarg_size 96
  .amdhsa_user_sgpr_count 2
  .amdhsa_user_sgpr_kernarg_segment_ptr 1
  .amdhsa_system_sgpr_workgroup_id_x 1
.end_amdhsa_kernel
"""
    open(path, "w").write(out)

if __name__ == "__main__":
    gen(sys.argv[1] if len(sys.argv) > 1 else "sequential_preLN__mha_block_cached__glu_gated_glu__decode.s")
```

```python
import struct, sys
KN = "sequential_preLN__mha_block_cached__glu_gated_glu__decode_kernel"
HDR = open("sequential_preLN__mha_block_cached__glu_gated_glu__decode.s.ref").read().split("; Override")[0]

def f32(x): return "0x%08x" % struct.unpack("<I", struct.pack("<f", x))[0]

WS_QP = 0x000000
WS_CL = 0x080000
WS_OB = WS_CL
WS_ML = WS_OB + 98304
WS_YB = WS_ML + 2048
WS_HB = WS_YB + 20480
assert WS_HB + 6144 <= WS_CL + 131072
WS_FL = 0x0C0000
WS_DIAG = 0x200000
WS_WIN = 0x400000
OOB = 0x40000000
L_R = 0
L_QL = L_R + 12288
L_QB = L_QL + 3072
L_MX = L_QB + 1536
L_LS = L_MX + 16
L_T = L_LS + 16
L_W = (L_T + 6144 + 255) // 256 * 256
LDS_BYTES = L_W + 104448

class Asm:
    def __init__(s):
        s.L = []; s.vm = []
    def __call__(s, *lines):
        for x in lines: s.L.append("    " + x)
    def label(s, n): s.L.append(n + ":")
    def c(s, t): s.L.append("    ; " + t)
    def vmem(s, line, tag=None):
        s(line); s.vm.append(tag)
        assert len(s.vm) <= 63, "vmcnt overflow"
    def wait(s, tag):
        idx = [i for i, t in enumerate(s.vm) if t == tag]
        if not idx: return
        n = len(s.vm) - 1 - idx[-1]
        s(f"s_waitcnt vmcnt({n})")
        s.vm = s.vm[idx[-1]+1:]
    def waitall(s):
        s("s_waitcnt vmcnt(0)"); s.vm = []
    def execm(s, m):
        if m == (1 << 64) - 1: s("s_mov_b64 exec, -1")
        elif m <= 64: s(f"s_mov_b64 exec, {m}")
        else: s(f"s_mov_b32 exec_lo, {hex(m & 0xffffffff)}", f"s_mov_b32 exec_hi, {hex(m >> 32)}")

def vr(b, n): return f"v[{b}:{b+n-1}]"
ALL = (1 << 64) - 1
DPP = "row_mask:0xf bank_mask:0xf"

def gen(path, diag=False, RING=16, LAG=4, CATCH=3, rot=1, fl_ld=10, fl_chk=13, q_use=15, spin=1 << 22, psleep=0,
        roleA0=0, roleB0=80, roleC0=128):
    a = Asm()
    sW, sBH, sJ, sH, sB, sM8 = 3, 64, 65, 66, 67, 68
    sIT, sOFF, sT0, sT1, sT2, sT3, sCNT = 69, 70, 71, 72, 73, 74, 75
    sMu0, sMu1, sRs0, sRs1 = 76, 77, 78, 79
    sRole, sR, sC, sTK = 76, 77, 78, 79
    rK, rV, rWQ, rX, rWS, rDBG, rW1, rW2, rOUT = 28, 32, 36, 40, 44, 48, 52, 56, 60
    def srd(r): return f"s[{r}:{r+3}]"
    def mksrd(r, p, n): a(f"s_mov_b32 s{r}, s{p}", f"s_mov_b32 s{r+1}, s{p+1}", f"s_mov_b32 s{r+2}, {n}", f"s_mov_b32 s{r+3}, 0x20000")
    nst = [0]
    def stamp(i):
        if diag: a(f"s_memrealtime s[{80+2*i}:{81+2*i}]")
    vL, vKV, vM = 1, 2, 3
    t = list(range(7, 20))
    vQ = 20; vS = 32; vRING = 64
    def ring(n): return vRING + 12 * (n % RING)
    T = 208

    a.label(KN)
    stamp(0)
    a("s_cmp_ge_u32 s2, 256", "s_cbranch_scc1 L_done")
    a("s_load_dwordx16 s[4:19], s[0:1], 0", "s_load_dwordx8 s[20:27], s[0:1], 64")
    a(f"v_lshrrev_b32 v{t[0]}, 6, v0", f"v_and_b32 v{vL}, 63, v0", f"v_readfirstlane_b32 s{sW}, v{t[0]}")
    a(f"s_and_b32 s{sBH}, s2, 63", f"s_lshr_b32 s{sJ}, s2, 6", f"s_and_b32 s{sH}, s2, 31", f"s_lshr_b32 s{sB}, s{sBH}, 5",
      f"s_lshl_b32 s{sM8}, s{sB}, 2", f"s_add_u32 s{sM8}, s{sM8}, s{sJ}")
    vK8, vC8 = t[1], t[2]
    a(f"v_lshrrev_b32 v{vK8}, 3, v{vL}", f"v_and_b32 v{vC8}, 7, v{vL}")
    a(f"v_mul_u32_u24 v{t[3]}, 40, v{vL}")
    a(f"s_mul_i32 s{sT0}, s{sM8}, 80", f"s_lshl_b32 s{sT1}, s{sW}, 3", f"s_add_u32 s{sT0}, s{sT0}, s{sT1}")
    a(f"v_add_u32 v{t[4]}, s{sT0}, v{vK8}")
    a(f"v_lshlrev_b32 v{t[5]}, 1, v{t[4]}")
    a(f"v_mul_u32_u24 v{t[6]}, 12288, v{t[4]}", f"v_lshl_add_u32 v{t[6]}, v{vC8}, 4, v{t[6]}")
    a(f"s_mul_i32 s{sT1}, s{sH}, 384", f"s_add_u32 s{sT2}, s{sT1}, {32*12288}")
    a(f"s_cmp_lt_u32 s{sW}, 2", f"s_cselect_b32 s{sT3}, {64*12288}, {OOB}")
    a(f"v_add_u32 v{t[7]}, s{sT3}, v{t[6]}")
    a(f"s_mul_i32 s{sT0}, s{sBH}, 1572864", f"s_lshl_b32 s{sT3}, s{sJ}, 2", f"s_add_u32 s{sT3}, s{sT3}, s{sW}",
      f"s_mul_i32 s{sT3}, s{sT3}, 3072", f"s_add_u32 s{sT0}, s{sT0}, s{sT3}")
    a(f"v_mul_u32_u24 v{vKV}, 384, v{vK8}", f"v_lshl_add_u32 v{vKV}, v{vC8}, 4, v{vKV}", f"v_add_u32 v{vKV}, s{sT0}, v{vKV}")
    if rot: a(f"s_mul_i32 s{sIT}, s{sBH}, {rot}", f"s_and_b32 s{sIT}, s{sIT}, 31")
    else: a(f"s_mov_b32 s{sIT}, 0")
    vFL = t[11]
    a(f"v_lshrrev_b32 v{vFL}, 1, v{vL}", f"v_and_b32 v{t[10]}, 1, v{vL}", f"v_lshlrev_b32 v{vFL}, 7, v{vFL}", f"v_lshl_add_u32 v{vFL}, v{t[10]}, 4, v{vFL}",
      f"v_add_u32 v{vFL}, {WS_FL}, v{vFL}", f"s_or_b32 s{sCNT}, s2, s{sW}", f"s_cselect_b32 s{sCNT}, {OOB}, 0", f"v_add_u32 v{t[8]}, s{sCNT}, v{vFL}")
    for i in range(4): a(f"v_mov_b32 v{48+i}, -1")
    a("s_waitcnt lgkmcnt(0)")
    mksrd(rX, 4, 2560); mksrd(rWS, 26, WS_WIN)
    a.vmem(f"buffer_store_dwordx4 {vr(48,4)}, v{t[8]}, {srd(rWS)}, 0 offen sc1", "xs")
    a.vmem(f"buffer_load_dwordx4 {vr(32,4)}, v{t[3]}, {srd(rX)}, 0 offen", "xs")
    a.vmem(f"buffer_load_dwordx4 {vr(36,4)}, v{t[3]}, {srd(rX)}, 0 offen offset:16", "xs")
    a.vmem(f"buffer_load_dwordx2 {vr(40,2)}, v{t[3]}, {srd(rX)}, 0 offen offset:32", "xs")
    mksrd(rWQ, 10, 640*12288)
    for g in range(3):
        for i in range(3):
            vo, so = (t[6], sT1) if g == 0 else (t[6], sT2) if g == 1 else (t[7], sT1)
            a.vmem(f"buffer_load_dwordx4 a[{12*g+4*i}:{12*g+4*i+3}], v{vo}, {srd(rWQ)}, s{so} offen offset:{128*i} nt", f"wq{g}")
        if g == 0:
            for g2 in range(3):
                for b in range(2):
                    a.vmem(f"buffer_load_ushort v{42+2*g2+b}, v{t[5]}, {srd(rX)}, 0 offen offset:{b*1280+g2*64}", "xr")
    mksrd(rK, 6, 100663296); mksrd(rV, 8, 100663296); mksrd(rDBG, 24, 4)

    issued = [0]
    def issue():
        n = issued[0]; issued[0] += 1
        r = ring(n); R = rK if n < 32 else rV
        a(f"s_mul_i32 s{sOFF}, s{sIT}, 49152")
        for i in range(3):
            a.vmem(f"buffer_load_dwordx4 {vr(r+4*i,4)}, v{vKV}, {srd(R)}, s{sOFF} offen offset:{128*i} nt", f"g{n}")
        if n < 63: a(f"s_add_u32 s{sIT}, s{sIT}, 1", f"s_and_b32 s{sIT}, s{sIT}, 31")
    issue()
    a(f"s_lshl_b32 s{sT0}, s2, 9", f"s_add_u32 s{sT0}, s{sT0}, {WS_CL}")
    a(f"v_lshl_add_u32 v{t[8]}, v0, 4, s{sT0}", f"v_cmp_gt_u32 vcc, 32, v0", f"v_mov_b32 v{t[9]}, {OOB}", "s_nop 0")
    a(f"v_cndmask_b32 v{t[8]}, v{t[9]}, v{t[8]}, vcc")
    a.vmem(f"buffer_store_dwordx4 {vr(48,4)}, v{t[8]}, {srd(rWS)}, 0 offen sc1", "clr")
    a(f"v_lshlrev_b32 v{t[10]}, 4, v{t[10]}", f"v_mov_b32 v{t[0]}, 0xffff",
      f"v_lshlrev_b32 v{t[10]}, v{t[10]}, v{t[0]}", f"v_lshrrev_b32 v{t[0]}, 1, v{vC8}")
    for j in range(4):
        a(f"v_cmp_eq_u32 vcc, {j}, v{t[0]}", "s_nop 1", f"v_cndmask_b32 v{vM+j}, 0, v{t[10]}, vcc")
    a(f"v_lshl_add_u32 v{t[0]}, v{vL}, 2, s{sCNT}")
    a.wait("xs")
    a.vmem(f"buffer_store_dword v48, v{t[0]}, {srd(rDBG)}, 0 offen sc1", "boot")
    stamp(1)
    for i in range(10):
        a(f"v_lshlrev_b32 v{T+2*i}, 16, v{32+i}", f"v_and_b32 v{T+2*i+1}, 0xffff0000, v{32+i}")
    x0, x1 = T + 20, T + 21
    a(f"v_add_f32 v{x0}, v{T}, v{T+1}", f"v_add_f32 v{x1}, v{T+2}, v{T+3}")
    for i in range(4, 20, 2): a(f"v_add_f32 v{x0}, v{x0}, v{T+i}", f"v_add_f32 v{x1}, v{x1}, v{T+i+1}")
    a(f"v_add_f32 v{x0}, v{x0}, v{x1}")
    def red32(x, y, op="add"):
        for d in ("quad_perm:[1,0,3,2]", "quad_perm:[2,3,0,1]", "row_half_mirror", "row_mirror"):
            a("s_nop 1", f"v_{op}_f32_dpp v{x}, v{x}, v{x} {d} {DPP}")
        a(f"v_mov_b32 v{y}, v{x}", "s_nop 1", f"v_permlane16_swap_b32 v{x}, v{y}", f"v_{op}_f32 v{x}, v{x}, v{y}")
    red32(x0, x1)
    mu = T + 22
    a(f"v_mul_f32 v{mu}, {f32(1/640)}, v{x0}")
    issue()
    for i in range(20): a(f"v_sub_f32 v{T+i}, v{T+i}, v{mu}")
    a(f"v_mul_f32 v{x0}, v{T}, v{T}", f"v_mul_f32 v{x1}, v{T+1}, v{T+1}")
    for i in range(2, 20, 2): a(f"v_fmac_f32 v{x0}, v{T+i}, v{T+i}", f"v_fmac_f32 v{x1}, v{T+i+1}, v{T+i+1}")
    a(f"v_add_f32 v{x0}, v{x0}, v{x1}")
    red32(x0, x1)
    a(f"v_mul_f32 v{x0}, {f32(1/640)}, v{x0}", f"v_cvt_pk_bf16_f32 v{x0}, 0, v{x0}", f"v_add_f32 v{x0}, {f32(1e-5)}, v{x0}",
      f"v_cvt_pk_bf16_f32 v{x0}, 0, v{x0}", f"v_sqrt_f32 v{x0}, v{x0}", f"v_cvt_pk_bf16_f32 v{mu}, 0, v{mu}",
      f"v_cvt_pk_bf16_f32 v{x0}, 0, v{x0}", f"v_rcp_f32 v{x0}, v{x0}",
      f"v_readlane_b32 s{sMu0}, v{mu}, 0", f"v_readlane_b32 s{sMu1}, v{mu}, 32",
      f"v_readlane_b32 s{sRs0}, v{x0}, 0", f"v_readlane_b32 s{sRs1}, v{x0}, 32")
    issue()
    a.wait("xr")
    for k in range(6): a(f"v_lshlrev_b32 v{42+k}, 16, v{42+k}")
    for k in range(6): a(f"v_subrev_f32 v{42+k}, s{sMu0+(k&1)}, v{42+k}")
    for k in range(6): a(f"v_cvt_pk_bf16_f32 v{42+k}, 0, v{42+k}")
    for k in range(6): a(f"v_mul_f32 v{42+k}, s{sRs0+(k&1)}, v{42+k}")
    for k in range(6): a(f"v_cvt_pk_bf16_f32 v{42+k}, v{42+k}, v{42+k}")
    for k in range(6):
        for j in range(4): a(f"v_and_b32 v{T+24+4*k+j}, v{42+k}, v{vM+j}")
    for g in range(3):
        a.wait(f"wq{g}")
        if g == 0: a("s_nop 0")
        for b in range(2):
            for i in range(3):
                d = vr(T+12*b+4*i, 4)
                a(f"v_mfma_f32_16x16x32_bf16 {d}, {vr(T+24+8*g+4*b,4)}, a[{12*g+4*i}:{12*g+4*i+3}], {'0' if g == 0 else d}")
    vDF = t[3]
    a(f"v_lshrrev_b32 v{t[4]}, 5, v{vL}", f"v_and_b32 v{vDF}, 16, v{vL}", f"v_lshl_add_u32 v{vDF}, v{vC8}, 5, v{vDF}")
    a(f"v_mul_u32_u24 v{t[5]}, 1536, v{t[4]}", f"s_mul_i32 s{sT0}, s{sW}, 3072", f"v_add3_u32 v{t[5]}, v{t[5]}, v{vDF}, s{sT0}")
    vOR = t[12]
    a(f"s_lshl_b32 s{sT0}, s{sW}, 11", f"v_lshl_add_u32 v{vOR}, v{t[4]}, 10, v{vDF}", f"v_add_u32 v{vOR}, s{sT0}, v{vOR}")
    VALID = 0xFF00FF0000FF00FF
    a.execm(VALID)
    for b in range(2):
        for i in range(3):
            a(f"ds_write_b128 v{t[5]}, {vr(T+12*b+4*i,4)} offset:{L_R + b*768 + i*256}")
    a.execm(ALL)
    issue()
    a("s_waitcnt lgkmcnt(0)", "s_barrier")
    a(f"v_lshlrev_b32 v{t[4]}, 4, v{vL}")
    a(f"s_cmp_lg_u32 s{sW}, 0", "s_cbranch_scc1 L_qnored")
    for b in range(2):
        base = 32 if b == 0 else T
        for k in range(8): a(f"ds_read_b128 {vr(base+4*k,4)}, v{t[4]} offset:{L_R + k*1536 + b*768}")
    for b in range(2):
        base = 32 if b == 0 else T
        a(f"s_waitcnt lgkmcnt({8 if b == 0 else 0})")
        for st in (16, 8, 4):
            for k in range(0, st, 2): a(f"v_pk_add_f32 {vr(base+k,2)}, {vr(base+k,2)}, {vr(base+k+st,2)}")
    a.label("L_qnored")
    a(f"s_lshl_b32 s{sT0}, s{sH}, 3", f"s_add_u32 s{sT0}, s{sT0}, s{sM8}", f"s_mul_i32 s{sT0}, s{sT0}, 1536")
    a(f"v_cmp_gt_u32 vcc, 48, v0", f"v_add_u32 v{t[4]}, s{sT0}, v{t[4]}", "s_nop 0", f"v_cndmask_b32 v{t[4]}, v{t[9]}, v{t[4]}, vcc")
    a.vmem(f"buffer_store_dwordx4 {vr(32,4)}, v{t[4]}, {srd(rWS)}, 0 offen offset:{WS_QP} sc1", "qst")
    a.vmem(f"buffer_store_dwordx4 {vr(T,4)}, v{t[4]}, {srd(rWS)}, 0 offen offset:{WS_QP+768} sc1", "qst")
    a.vmem(f"buffer_load_dword v{t[5]}, off, {srd(rDBG)}, 0 sc1", "qst")
    stamp(2)
    issue(); issue()
    def spinchk(name, ld, cmp):
        a(*cmp, f"s_mov_b32 s{sCNT}, 0", f"s_cbranch_vccz {name}ok")
        a.label(name + "spin")
        a(ld, f"s_add_u32 s{sCNT}, s{sCNT}, 1", "s_waitcnt vmcnt(0)", *cmp, f"s_cbranch_vccz {name}ok", f"s_cmp_lt_u32 s{sCNT}, {spin}", f"s_cbranch_scc1 {name}spin")
        a.label(name + "ok")
    a(f"s_lshl_b32 s{sT0}, s{sH}, 7", f"s_lshl_b32 s{sT1}, s{sM8}, 2", f"s_add_u32 s{sT0}, s{sT0}, {WS_FL}", f"s_add_u32 s{sT1}, s{sT1}, s{sT0}")
    a(f"v_cmp_eq_u32 vcc, 0, v0", f"v_mov_b32 v{t[4]}, s{sT1}", f"v_mov_b32 v{t[6]}, 1", f"v_cndmask_b32 v{t[4]}, v{t[9]}, v{t[4]}, vcc")
    a.wait("qst")
    spinchk("L_bt", f"buffer_load_dword v{t[5]}, off, {srd(rDBG)}, 0 sc1", [f"v_cmp_ne_u32 vcc, -1, v{t[5]}"])
    a.vmem(f"buffer_store_dword v{t[6]}, v{t[4]}, {srd(rWS)}, 0 offen sc1", "flag")
    stamp(3)
    a(f"v_lshl_add_u32 v{t[4]}, v{vC8}, 2, s{sT0}")
    while issued[0] <= fl_ld: issue()
    fld = f"buffer_load_dword v{t[5]}, v{t[4]}, {srd(rWS)}, 0 offen sc1"
    a.vmem(fld, "fl")
    while issued[0] <= fl_chk: issue()
    a(f"s_lshl_b32 s{sT0}, s{sH}, 3", f"s_lshl_b32 s{sT1}, s{sW}, 1", f"s_add_u32 s{sT0}, s{sT0}, s{sT1}", f"s_mul_i32 s{sT0}, s{sT0}, 1536",
      f"s_mul_i32 s{sT1}, s{sB}, 768", f"s_add_u32 s{sT0}, s{sT0}, s{sT1}")
    a(f"v_cmp_gt_u32 vcc, 48, v{vL}", f"v_lshl_add_u32 v{t[6]}, v{vL}, 4, s{sT0}", f"s_mov_b32 s{sCNT}, 0", f"v_cndmask_b32 v{t[6]}, v{t[9]}, v{t[6]}, vcc")
    a.wait("fl")
    spinchk("L_fl", fld, [f"v_cmp_ne_u32 vcc, 1, v{t[5]}"])
    if diag: a(f"s_mov_b32 s100, s{sCNT}")
    stamp(4)
    a.vmem(f"buffer_load_dwordx4 {vr(32,4)}, v{t[6]}, {srd(rWS)}, 0 offen offset:{WS_QP} sc1", "ql")
    a.vmem(f"buffer_load_dwordx4 {vr(36,4)}, v{t[6]}, {srd(rWS)}, 0 offen offset:{WS_QP+1536} sc1", "ql")
    while issued[0] <= q_use: issue()
    a(f"v_lshlrev_b32 v{t[4]}, 4, v{vL}", f"s_mul_i32 s{sT0}, s{sW}, 768", f"v_add_u32 v{t[5]}, s{sT0}, v{t[4]}")
    a(f"s_mul_i32 s{sT0}, s{sW}, 384", f"v_lshl_add_u32 v{t[6]}, v{vL}, 3, s{sT0}", f"v_lshl_add_u32 v{t[7]}, v{vC8}, 4, s{sT0}")
    a.wait("ql")
    a(f"v_pk_add_f32 {vr(32,2)}, {vr(32,2)}, {vr(36,2)}", f"v_pk_add_f32 {vr(34,2)}, {vr(34,2)}, {vr(38,2)}")
    a.execm((1 << 48) - 1)
    a(f"ds_write_b128 v{t[5]}, {vr(32,4)} offset:{L_QL}", "s_waitcnt lgkmcnt(0)", "s_barrier")
    for k in range(4): a(f"ds_read_b128 {vr(32+4*k,4)}, v{t[4]} offset:{L_QL + 768*k}")
    a("s_waitcnt lgkmcnt(0)")
    for st in (8, 4):
        for k in range(0, st, 2): a(f"v_pk_add_f32 {vr(32+k,2)}, {vr(32+k,2)}, {vr(32+k+st,2)}")
    a(f"v_cvt_pk_bf16_f32 v32, v32, v33", f"v_cvt_pk_bf16_f32 v33, v34, v35")
    a(f"ds_write_b64 v{t[6]}, {vr(32,2)} offset:{L_QB}")
    a.execm(ALL)
    a("s_waitcnt lgkmcnt(0)")
    for i in range(3): a(f"ds_read_b128 {vr(vQ+4*i,4)}, v{t[7]} offset:{L_QB + 128*i}")
    a(f"s_mov_b32 s{sT3}, {f32(192**-0.5)}")
    a("s_waitcnt lgkmcnt(0)")
    stamp(5)

    def post(n):
        s_ = vS + n
        return [f"v_add_f32_dpp v{s_}, v{s_}, v{s_} quad_perm:[1,0,3,2] {DPP}", f"v_add_f32_dpp v{s_}, v{s_}, v{s_} quad_perm:[2,3,0,1] {DPP}",
                f"v_add_f32_dpp v{s_}, v{s_}, v{s_} row_half_mirror {DPP}", f"v_cvt_pk_bf16_f32 v{s_}, 0, v{s_}",
                f"v_mul_f32 v{s_}, s{sT3}, v{s_}", f"v_cvt_pk_bf16_f32 v{s_}, 0, v{s_}"]
    def consumeK(n):
        a.wait(f"g{n}")
        r = ring(n); s_ = vS + n
        p = post(n-1) if n > 0 else []
        slots = {2: 0, 4: 1, 6: 2, 8: 3, 9: 4, 10: 5}
        for k in range(12):
            a(f"v_dot2_f32_bf16 v{s_}, v{r+k}, v{vQ+k}, {'0' if k == 0 else 'v%d' % s_}")
            if p and k in slots: a(p[slots[k]])
    cons = 0
    while cons < 32:
        lag = issued[0] - cons
        k = CATCH if lag > LAG + 1 else 1
        for _ in range(min(k, max(1, lag - LAG), 32 - cons)):
            consumeK(cons); cons += 1
            ald = f"buffer_load_dwordx4 {vr(8,4)}, v{vFL}, {srd(rWS)}, 0 offen sc1"
            if cons == 20: a.vmem(ald, "all")
            if cons == 28:
                a.wait("all")
                spinchk("L_al", ald, ["v_max3_u32 v12, v8, v9, v10", "v_max_u32 v12, v12, v11", "v_cmp_ne_u32 vcc, 1, v12"])
        if issued[0] - cons < RING: issue()
    last = post(31)
    a("s_nop 2", last[0], "s_nop 1", last[1], "s_nop 1", *last[2:])
    stamp(6)
    m0, m1 = t[4], t[5]
    a(f"v_max3_f32 v{m0}, v{vS}, v{vS+1}, v{vS+2}", f"v_max3_f32 v{m1}, v{vS+3}, v{vS+4}, v{vS+5}")
    for k in range(6, 30, 4): a(f"v_max3_f32 v{m0}, v{m0}, v{vS+k}, v{vS+k+1}", f"v_max3_f32 v{m1}, v{m1}, v{vS+k+2}, v{vS+k+3}")
    a(f"v_max3_f32 v{m0}, v{m0}, v{vS+30}, v{vS+31}", f"v_max_f32 v{m0}, v{m0}, v{m1}")
    def redkeys(x, y, op):
        a("s_nop 1", f"v_{op}_f32_dpp v{x}, v{x}, v{x} row_ror:8 {DPP}")
        a(f"v_mov_b32 v{y}, v{x}", "s_nop 1", f"v_permlane16_swap_b32 v{x}, v{y}", f"v_{op}_f32 v{x}, v{x}, v{y}")
        a(f"v_mov_b32 v{y}, v{x}", "s_nop 1", f"v_permlane32_swap_b32 v{x}, v{y}", f"v_{op}_f32 v{x}, v{x}, v{y}")
    redkeys(m0, m1, "max")
    vW4, vZ = t[6], t[7]
    a(f"s_lshl_b32 s{sT0}, s{sW}, 2", f"v_mov_b32 v{vW4}, s{sT0}", f"v_mov_b32 v{vZ}, 0")
    a.execm(1)
    a(f"ds_write_b32 v{vW4}, v{m0} offset:{L_MX}")
    a.execm(ALL)
    issue()
    a("s_waitcnt lgkmcnt(0)", "s_barrier", f"ds_read_b128 {vr(vQ,4)}, v{vZ} offset:{L_MX}", f"s_mov_b32 s{sT3}, {f32(1.4426950408889634)}", "s_waitcnt lgkmcnt(0)")
    vMx, vLs = t[8], t[10]
    a(f"v_max3_f32 v{vMx}, v{vQ}, v{vQ+1}, v{vQ+2}", f"v_max_f32 v{vMx}, v{vMx}, v{vQ+3}", f"v_mul_f32 v{vMx}, s{sT3}, v{vMx}")
    for k0 in range(0, 32, 8):
        for k in range(k0, k0+8): a(f"v_fma_f32 v{vS+k}, v{vS+k}, s{sT3}, -v{vMx}")
        for k in range(k0, k0+8): a(f"v_exp_f32 v{vS+k}, v{vS+k}")
        for k in range(k0, k0+8, 2):
            if k == 0: a(f"v_mov_b32 v{vLs}, v{vS}", f"v_mov_b32 v{m1}, v{vS+1}")
            else: a(f"v_add_f32 v{vLs}, v{vLs}, v{vS+k}", f"v_add_f32 v{m1}, v{m1}, v{vS+k+1}")
        for k in range(k0, k0+8): a(f"v_cvt_pk_bf16_f32 v{vS+k}, v{vS+k}, v{vS+k}")
        if k0 == 8: issue()
    a(f"v_add_f32 v{vLs}, v{vLs}, v{m1}")
    redkeys(vLs, m1, "add")
    a.execm(1)
    a(f"ds_write_b32 v{vW4}, v{vLs} offset:{L_LS}")
    a.execm(ALL)
    vA = 8
    assert t[1] == 8
    vAcc = vQ
    def consumeV(n):
        for j in range(4): a(f"v_and_b32 v{vA+j}, v{vS+n-32}, v{vM+j}")
        a.wait(f"g{n}")
        a("s_nop 0")
        r = ring(n)
        for i in range(3):
            d = vr(vAcc+4*i, 4)
            a(f"v_mfma_f32_16x16x32_bf16 {d}, {vr(vA,4)}, {vr(r+4*i,4)}, {'0' if n == 32 else d}")
    while cons < 64:
        lag = issued[0] - cons
        k = CATCH if lag > LAG + 1 else 1
        for _ in range(min(k, max(1, lag - LAG), 64 - cons)):
            consumeV(cons); cons += 1
            if cons == 36:
                s0 = vS
                a("s_waitcnt lgkmcnt(0)", "s_barrier", f"ds_read_b128 {vr(s0,4)}, v{vZ} offset:{L_LS}")
                a(f"s_lshl_b32 s{sT0}, s{sH}, 6", f"s_lshl_b32 s{sT1}, s{sB}, 5", f"s_add_u32 s{sT0}, s{sT0}, s{sT1}",
                  f"s_lshl_b32 s{sT1}, s{sJ}, 2", f"s_add_u32 s{sT0}, s{sT0}, s{sT1}", f"s_add_u32 s{sT0}, s{sT0}, {WS_ML}")
                a(f"v_lshl_add_u32 v{m1}, v0, 4, s{sT0}", "v_cmp_gt_u32 vcc, 2, v0", "s_waitcnt lgkmcnt(0)",
                  f"v_add_f32 v{s0}, v{s0}, v{s0+1}", f"v_cndmask_b32 v{m1}, v{t[9]}, v{m1}, vcc", "v_cmp_eq_u32 vcc, 0, v0",
                  f"v_add_f32 v{s0+2}, v{s0+2}, v{s0+3}", f"v_add_f32 v{s0}, v{s0}, v{s0+2}", f"v_cndmask_b32 v{s0}, v{s0}, v{vMx}, vcc",
                  f"v_min_u32 v{s0}, -2, v{s0}")
                a.vmem(f"buffer_store_dword v{s0}, v{m1}, {srd(rWS)}, 0 offen sc1", "ml")
            if cons == 40:
                a(f"s_mul_i32 s{sT0}, s{sH}, 3072", f"s_lshl_b32 s{sT1}, s{sM8}, 6", f"s_add_u32 s{sT0}, s{sT0}, s{sT1}", f"s_add_u32 s{sT0}, s{sT0}, {WS_OB}")
                a(f"v_lshrrev_b32 v{m1}, 4, v0", f"v_and_b32 v{vW4}, 15, v0", f"v_lshlrev_b32 v{m1}, 9, v{m1}", f"v_lshl_add_u32 v{m1}, v{vW4}, 2, v{m1}",
                  f"v_cmp_gt_u32 vcc, 96, v0", f"v_add_u32 v{m1}, s{sT0}, v{m1}", f"v_lshlrev_b32 v{vW4}, 3, v0", f"v_cndmask_b32 v{m1}, v{t[9]}, v{m1}, vcc")
        if issued[0] < 64 and issued[0] - cons < RING: issue()
    stamp(7)
    a.execm(VALID)
    a("s_nop 3")
    for i in range(3): a(f"ds_write_b128 v{vOR}, {vr(vAcc+4*i,4)} offset:{L_R + i*256}")
    a.execm(ALL)
    a("s_waitcnt lgkmcnt(0)", "s_barrier")
    a(f"s_cmp_ge_u32 s{sW}, 2", "s_cbranch_scc1 L_onored")
    a(f"v_add_u32 v{vW4}, {L_R}, v{vW4}")
    for k in range(4): a(f"ds_read2st64_b64 {vr(32+4*k,4)}, v{vW4} offset0:{4*k} offset1:{4*k+2}")
    a("s_waitcnt lgkmcnt(2)", f"v_pk_add_f32 {vr(32,2)}, {vr(32,2)}, {vr(34,2)}", f"v_pk_add_f32 {vr(36,2)}, {vr(36,2)}, {vr(38,2)}",
      f"v_pk_add_f32 {vr(32,2)}, {vr(32,2)}, {vr(36,2)}",
      "s_waitcnt lgkmcnt(0)", f"v_pk_add_f32 {vr(40,2)}, {vr(40,2)}, {vr(42,2)}", f"v_pk_add_f32 {vr(44,2)}, {vr(44,2)}, {vr(46,2)}",
      f"v_pk_add_f32 {vr(32,2)}, {vr(32,2)}, {vr(40,2)}", f"v_pk_add_f32 {vr(32,2)}, {vr(32,2)}, {vr(44,2)}",
      f"v_cvt_pk_bf16_f32 v32, v32, v33", f"v_min_u32 v32, -2, v32",
      f"buffer_store_dword v32, v{m1}, {srd(rWS)}, 0 offen sc1")
    a.label("L_onored")
    stamp(8)
    a.vm = []
    vG, vRR, vCC, vN = 7, 8, 9, 10
    a(f"v_lshrrev_b32 v{vG}, 4, v{vL}", f"v_bfe_u32 v{vRR}, v{vL}, 2, 2", f"v_and_b32 v{vCC}, 3, v{vL}", f"v_and_b32 v{vN}, 15, v{vL}")
    a(f"s_mov_b32 s{sTK}, s2")
    a(f"s_sub_u32 s{sRole}, s2, {roleA0}", f"s_cmp_lt_u32 s{sRole}, 80", "s_cbranch_scc1 L_roleA")
    a(f"s_sub_u32 s{sRole}, s2, {roleB0}", f"s_cmp_lt_u32 s{sRole}, 48", "s_cbranch_scc1 L_roleB")
    a(f"s_sub_u32 s{sRole}, s2, {roleC0}", f"s_cmp_lt_u32 s{sRole}, 40", "s_cbranch_scc1 L_roleC")
    a("s_branch L_end")
    HALF = 0x00FF00FF00FF00FF
    LO32 = 0xFFFFFFFF
    pc = [0]
    def poll(loads, regs, mask):
        pc[0] += 1; k = pc[0]
        a(f"s_mov_b32 s{sCNT}, 0")
        a.execm(mask)
        a.label(f"L_poll{k}")
        for x in loads: a(x)
        a(f"s_add_u32 s{sCNT}, s{sCNT}, 1")
        x0_, x1_ = 11, 12
        nl = len(loads); per = len(regs) // nl
        first = True
        for i in range(nl):
            a(f"s_waitcnt vmcnt({nl-1-i})")
            rs = regs[i*per:(i+1)*per]
            if first: a(f"v_max3_u32 v{x0_}, v{rs[0]}, v{rs[1]}, v{rs[2]}", f"v_max_u32 v{x0_}, v{x0_}, v{rs[3]}"); first = False
            else: a(f"v_max3_u32 v{x0_}, v{x0_}, v{rs[0]}, v{rs[1]}", f"v_max3_u32 v{x0_}, v{x0_}, v{rs[2]}, v{rs[3]}")
        a(f"v_cmp_eq_u32 vcc, -1, v{x0_}", f"s_cbranch_vccz L_pok{k}", "s_mov_b64 exec, vcc")
        if psleep: a(f"s_sleep {psleep}")
        a(f"s_cmp_lt_u32 s{sCNT}, {spin}", f"s_cbranch_scc1 L_poll{k}")
        a.label(f"L_pok{k}")
        a.execm(ALL)
    W = 64
    a.label("L_roleA")
    a(f"s_and_b32 s{sR}, s{sRole}, 7", f"s_lshr_b32 s{sC}, s{sRole}, 3")
    mksrd(rW1, 12, 6144*1280)
    a(f"s_lshl_b32 s{sH}, s{sR}, 2", f"s_add_u32 s{sH}, s{sH}, s{sW}")
    a(f"v_lshrrev_b32 v11, 3, v{vL}", f"v_mul_u32_u24 v11, 1280, v11", f"v_and_b32 v12, 1, v{vG}", f"v_lshlrev_b32 v12, 1, v12",
      f"v_and_b32 v13, 7, v{vL}", f"v_xor_b32 v12, v12, v13", f"v_lshl_add_u32 v11, v12, 4, v11")
    a(f"s_mul_i32 s{sOFF}, s{sH}, {192*1280}", f"s_lshl_b32 s{sT0}, s{sC}, 7", f"s_add_u32 s{sOFF}, s{sOFF}, s{sT0}", f"s_mul_i32 s{sT1}, s{sW}, 26112", f"s_add_u32 s{sT1}, s{sT1}, {L_W}",
      f"s_mov_b32 s{sT2}, s{sT1}")
    for q in range(24):
        a(f"s_mov_b32 m0, s{sT2}", f"s_add_u32 s{sT2}, s{sT2}, 1088", f"buffer_load_dwordx4 v11, {srd(rW1)}, s{sOFF} offen nt lds", f"s_add_u32 s{sOFF}, s{sOFF}, {8*1280}")
    a(f"s_cmp_eq_u32 s{sR}, 0", f"s_cselect_b32 s{sT0}, s{sT0}, {OOB}")
    a(f"v_lshrrev_b32 v14, 5, v{vL}", f"v_and_b32 v15, 31, v{vL}", f"v_mul_u32_u24 v16, 1280, v14", f"v_lshl_add_u32 v16, v15, 2, v16", f"v_add_u32 v16, s{sT0}, v16")
    a(f"buffer_load_dword v19, v16, {srd(rX)}, 0 offen")
    a(f"s_lshl_b32 s{sT0}, s{sC}, 11", f"s_lshl_b32 s{sT2}, s{sR}, 7", f"s_add_u32 s{sT0}, s{sT0}, s{sT2}", f"s_add_u32 s{sT0}, s{sT0}, {WS_YB}")
    a(f"v_and_b32 v15, 1, v{vG}", f"v_lshlrev_b32 v15, 10, v15", f"v_lshl_add_u32 v15, v14, 6, v15", f"v_lshl_add_u32 v15, v{vN}, 2, v15", f"v_add_u32 v16, s{sT0}, v15")
    a(f"v_lshlrev_b32 v17, 3, v{vL}", f"v_add_u32 v17, {L_T}, v17")
    a(f"s_lshl_b32 s{sT0}, s{sH}, 6", f"s_add_u32 s{sT0}, s{sT0}, {WS_ML}", f"v_and_b32 v13, 1, v{vG}", f"v_lshl_add_u32 v13, v13, 5, s{sT0}")
    poll([f"buffer_load_dwordx4 {vr(20,4)}, v13, {srd(rWS)}, 0 offen sc1", f"buffer_load_dwordx4 {vr(24,4)}, v13, {srd(rWS)}, 0 offen offset:16 sc1"], list(range(20, 28)), ALL)
    a("v_max3_f32 v28, v20, v21, v22", "v_max_f32 v28, v28, v23")
    for j in range(4): a(f"v_sub_f32 v{20+j}, v{20+j}, v28")
    for j in range(4): a(f"v_exp_f32 v{20+j}, v{20+j}")
    a("s_nop 0", "v_mul_f32 v28, v20, v24", "v_fmac_f32 v28, v21, v25", "v_fmac_f32 v28, v22, v26", "v_fmac_f32 v28, v23, v27", "v_rcp_f32 v28, v28", "s_nop 0")
    for j in range(4): a(f"v_mul_f32 v{20+j}, v{20+j}, v28")
    a("v_lshlrev_b32 v18, 16, v19", "v_and_b32 v19, 0xffff0000, v19")
    a(f"v_mul_u32_u24 v11, 1088, v{vG}", f"v_lshl_add_u32 v11, v{vRR}, 7, v11", f"v_lshl_add_u32 v11, v{vCC}, 3, v11", f"v_add_u32 v11, s{sT1}, v11",
      f"v_lshrrev_b32 v12, 1, v{vRR}", f"v_lshl_add_u32 v13, v12, 5, v11", f"v_xor_b32 v12, 1, v12", f"v_lshl_add_u32 v14, v12, 5, v11")
    for tt in range(6):
        for tile in range(4):
            for hf in range(2):
                a(f"ds_read_b64_tr_b16 {vr(W+16*tt+4*tile+2*hf,2)}, v{13+(tile&1)} offset:{tt*4352 + hf*512 + (tile>>1)*64}")
    a(f"s_mul_i32 s{sT0}, s{sH}, 3072", f"s_add_u32 s{sT0}, s{sT0}, {WS_OB}", f"v_and_b32 v13, 7, v{vL}", f"v_lshlrev_b32 v13, 6, v13",
      f"v_lshl_add_u32 v13, v{vG}, 4, v13", f"v_add_u32 v13, s{sT0}, v13")
    a(f"s_lshl_b32 s{sT0}, s{sW}, 9", f"s_add_u32 s{sT0}, s{sT0}, {L_T}", f"v_lshlrev_b32 v15, 8, v{vG}", f"v_lshl_add_u32 v15, v{vN}, 2, v15", f"v_add_u32 v15, s{sT0}, v15")
    for k in range(24): a(f"v_mov_b32 v{32+k}, 0")
    a("s_waitcnt lgkmcnt(0)")
    stamp(9)
    poll([f"buffer_load_dwordx4 {vr(32+4*tt,4)}, v13, {srd(rWS)}, 0 offen offset:{tt*512} sc1" for tt in range(6)], list(range(32, 56)), HALF)
    if diag: a("s_memrealtime s[82:83]")
    D = 160
    def epiA(tile):
        d = D + 4*tile
        return [f"v_mul_f32 v{d}, v{d}, v20", f"v_fmac_f32 v{d}, v{d+1}, v21", f"v_fmac_f32 v{d}, v{d+2}, v22", f"v_fmac_f32 v{d}, v{d+3}, v23"]
    for tile in range(4):
        for tt in range(6):
            d = vr(D+4*tile, 4)
            a(f"v_mfma_f32_16x16x32_bf16 {d}, {vr(32+4*tt,4)}, {vr(W+16*tt+4*tile,4)}, {'0' if tt == 0 else d}")
            if tile >= 2 and tt >= 2: a(epiA(tile-2)[tt-2])
    a.execm(LO32)
    a(*epiA(2))
    a(f"ds_write2_b32 v15, v{D}, v{D+4} offset0:0 offset1:16", "s_nop 0")
    a(*epiA(3))
    a(f"ds_write2_b32 v15, v{D+8}, v{D+12} offset0:32 offset1:48")
    a.execm(ALL)
    a("s_waitcnt lgkmcnt(0)", "s_barrier")
    a(f"s_cmp_lg_u32 s{sW}, 0", "s_cbranch_scc1 L_end")
    a(f"ds_read2st64_b64 {vr(32,4)}, v17 offset0:0 offset1:1", f"ds_read2st64_b64 {vr(36,4)}, v17 offset0:2 offset1:3")
    a("s_waitcnt lgkmcnt(1)", f"v_pk_add_f32 {vr(32,2)}, {vr(32,2)}, {vr(34,2)}", f"v_pk_add_f32 {vr(32,2)}, {vr(32,2)}, {vr(18,2)}",
      "s_waitcnt lgkmcnt(0)", f"v_pk_add_f32 {vr(36,2)}, {vr(36,2)}, {vr(38,2)}", f"v_pk_add_f32 {vr(32,2)}, {vr(32,2)}, {vr(36,2)}",
      "v_cvt_pk_bf16_f32 v32, v32, v33", "v_min_u32 v32, -2, v32", f"buffer_store_dword v32, v16, {srd(rWS)}, 0 offen sc1")
    a("s_branch L_end")

    a.label("L_roleB")
    mksrd(rW1, 16, 640*3072); mksrd(rW2, 18, 640*3072)
    a(f"v_lshrrev_b32 v11, 2, v{vL}", f"v_mul_u32_u24 v11, 3072, v11", f"v_lshrrev_b32 v12, 5, v{vL}", f"v_lshlrev_b32 v12, 1, v12",
      f"v_xor_b32 v12, v12, v{vCC}", f"v_lshl_add_u32 v11, v12, 4, v11")
    a(f"s_mul_i32 s{sOFF}, s{sW}, {160*3072}", f"s_lshl_b32 s{sT0}, s{sRole}, 6", f"s_add_u32 s{sOFF}, s{sOFF}, s{sT0}", f"s_mul_i32 s{sT1}, s{sW}, 20480", f"s_add_u32 s{sT1}, s{sT1}, {L_W}",
      f"s_mov_b32 s{sT2}, s{sT1}")
    for q in range(10):
        a(f"s_mov_b32 m0, s{sT2}", f"s_add_u32 s{sT3}, s{sT2}, 10240", f"buffer_load_dwordx4 v11, {srd(rW1)}, s{sOFF} offen nt lds",
          f"s_mov_b32 m0, s{sT3}", f"s_add_u32 s{sT2}, s{sT2}, 1024", f"buffer_load_dwordx4 v11, {srd(rW2)}, s{sOFF} offen nt lds",
          f"s_add_u32 s{sOFF}, s{sOFF}, {16*3072}")
    a(f"v_lshlrev_b32 v11, 9, v{vG}", f"v_lshl_add_u32 v11, v{vRR}, 6, v11", f"v_lshl_add_u32 v11, v{vCC}, 3, v11", f"v_add_u32 v11, s{sT1}, v11",
      f"v_and_b32 v12, 1, v{vG}", f"v_lshl_add_u32 v13, v12, 5, v11", f"v_xor_b32 v12, 1, v12", f"v_lshl_add_u32 v14, v12, 5, v11")
    ONE = 20
    for j in range(4): a(f"v_mov_b32 v{ONE+j}, 0x3f803f80")
    a("s_waitcnt vmcnt(0)")
    for tt in range(5):
        for tile in range(4):
            for hf in range(2):
                a(f"ds_read_b64_tr_b16 {vr(W+16*tt+4*tile+2*hf,2)}, v{13+(tile&1)} offset:{(tile>>1)*10240 + tt*2048 + hf*256}")
    a(f"s_mul_i32 s{sT0}, s{sW}, 5120", f"s_add_u32 s{sT0}, s{sT0}, {WS_YB}", f"v_and_b32 v15, 7, v{vL}", f"v_lshlrev_b32 v15, 7, v15",
      f"v_bfe_u32 v16, v{vL}, 3, 1", f"v_lshl_add_u32 v15, v16, 6, v15", f"v_lshl_add_u32 v15, v{vG}, 4, v15", f"v_add_u32 v15, s{sT0}, v15")
    a(f"s_lshl_b32 s{sT0}, s{sW}, 10", f"v_lshlrev_b32 v17, 4, v{vL}", f"v_add_u32 v17, {L_T}, v17", f"v_add_u32 v16, s{sT0}, v17")
    a(f"s_lshl_b32 s{sT0}, s{sRole}, 7", f"s_add_u32 s{sT0}, s{sT0}, {WS_HB}", f"v_lshl_add_u32 v18, v{vL}, 1, s{sT0}")
    a(f"s_mov_b32 s{sT3}, 4096", "s_waitcnt lgkmcnt(0)")
    for tile in range(4):
        for tt in range(5):
            d = vr(D+4*tile, 4)
            a(f"v_mfma_f32_16x16x32_bf16 {d}, {vr(ONE,4)}, {vr(W+16*tt+4*tile,4)}, {'0' if tt == 0 else d}")
    a(f"v_and_b32 v12, 1, v{vG}", "v_cmp_eq_u32 vcc, 1, v12", "s_nop 7",
      f"v_cndmask_b32 v24, v{D}, v{D+4}, vcc", f"v_cndmask_b32 v25, v{D+8}, v{D+12}, vcc")
    a(f"ds_write_b64 v16, {vr(24,2)}", "s_waitcnt lgkmcnt(0)", "s_barrier")
    for k in range(4): a(f"ds_read_b64 {vr(24+2*k,2)}, v17 offset:{1024*k}")
    a("s_waitcnt lgkmcnt(0)", f"v_pk_add_f32 {vr(24,2)}, {vr(24,2)}, {vr(26,2)}", f"v_pk_add_f32 {vr(28,2)}, {vr(28,2)}, {vr(30,2)}",
      f"v_pk_add_f32 {vr(24,2)}, {vr(24,2)}, {vr(28,2)}", "s_barrier")
    a(f"v_lshrrev_b32 v11, 5, v{vL}", f"v_bfe_u32 v12, v{vL}, 3, 1", "v_cmp_eq_u32 vcc, v11, v12", "s_nop 1", "v_cndmask_b32 v19, 0, -1, vcc")
    stamp(9)
    poll([f"buffer_load_dwordx4 {vr(32+4*tt,4)}, v15, {srd(rWS)}, {'0' if tt < 4 else 's%d' % sT3} offen offset:{(tt&3)*1024} sc1" for tt in range(5)],
         list(range(32, 52)), ALL)
    if diag: a("s_memrealtime s[82:83]")
    G2, G1 = 176, 180
    for tt in range(5): a(f"v_mfma_f32_16x16x32_bf16 {vr(G2,4)}, {vr(32+4*tt,4)}, {vr(32+4*tt,4)}, {'0' if tt == 0 else vr(G2,4)}")
    for tt in range(5): a(f"v_mfma_f32_16x16x32_bf16 {vr(G1,4)}, {vr(32+4*tt,4)}, {vr(ONE,4)}, {'0' if tt == 0 else vr(G1,4)}")
    side = [None, None, None,
            [f"v_add_f32 v31, v{G2}, v{G2+1}", f"v_add_f32 v11, v{G2+2}, v{G2+3}"],
            [f"v_add_f32 v31, v31, v11", f"v_and_b32 v31, v31, v19"],
            [f"s_nop 0"],
            [f"v_add_f32_dpp v31, v31, v31 quad_perm:[1,0,3,2] {DPP}", f"v_add_f32 v30, v{G1}, v{G1+1}"],
            [f"v_add_f32_dpp v31, v31, v31 quad_perm:[2,3,0,1] {DPP}", f"v_add_f32 v11, v{G1+2}, v{G1+3}"],
            [f"v_add_f32_dpp v31, v31, v31 row_half_mirror {DPP}", f"v_add_f32 v30, v30, v11"],
            [f"v_add_f32_dpp v31, v31, v31 row_ror:8 {DPP}", f"v_mov_b32 v11, v30"],
            [f"v_mov_b32 v12, v31", f"v_add_f32 v{D}, v{D}, v{D+1}"],
            [f"v_permlane16_swap_b32 v30, v11", f"v_permlane16_swap_b32 v31, v12"],
            [f"v_add_f32 v30, v30, v11", f"v_add_f32 v31, v31, v12"],
            [f"v_add_f32 v{D+2}, v{D+2}, v{D+3}", f"v_add_f32 v{D}, v{D}, v{D+2}"],
            [f"v_add_f32 v{D+4}, v{D+4}, v{D+5}", f"v_add_f32 v{D+6}, v{D+6}, v{D+7}"],
            [f"v_add_f32 v{D+4}, v{D+4}, v{D+6}"],
            ["s_nop 0"],
            [f"v_permlane16_swap_b32 v{D}, v{D+4}", f"v_add_f32 v28, v{D}, v{D+4}"],
            None,
            [f"v_add_f32 v{D+8}, v{D+8}, v{D+9}", f"v_add_f32 v{D+10}, v{D+10}, v{D+11}", f"v_add_f32 v{D+8}, v{D+8}, v{D+10}"]]
    k = 0
    for tile in range(4):
        for tt in range(5):
            d = vr(D+4*tile, 4)
            a(f"v_mfma_f32_16x16x32_bf16 {d}, {vr(32+4*tt,4)}, {vr(W+16*tt+4*tile,4)}, {'0' if tt == 0 else d}")
            if side[k]: a(*side[k])
            k += 1
    a("s_nop 4", f"v_add_f32 v{D+12}, v{D+12}, v{D+13}", f"v_add_f32 v{D+14}, v{D+14}, v{D+15}", f"v_add_f32 v{D+12}, v{D+12}, v{D+14}", "s_nop 1",
      f"v_permlane16_swap_b32 v{D+8}, v{D+12}", f"v_add_f32 v29, v{D+8}, v{D+12}")
    a(f"ds_write_b128 v16, {vr(28,4)}", "s_waitcnt lgkmcnt(0)", "s_barrier")
    a(f"s_cmp_lg_u32 s{sW}, 0", "s_cbranch_scc1 L_end")
    for k in range(1, 4): a(f"ds_read_b128 {vr(28+4*k,4)}, v17 offset:{1024*k}")
    a("s_waitcnt lgkmcnt(2)", f"v_pk_add_f32 {vr(30,2)}, {vr(30,2)}, {vr(34,2)}", f"v_pk_add_f32 {vr(28,2)}, {vr(28,2)}, {vr(32,2)}",
      "s_waitcnt lgkmcnt(0)", f"v_pk_add_f32 {vr(38,2)}, {vr(38,2)}, {vr(42,2)}", f"v_pk_add_f32 {vr(36,2)}, {vr(36,2)}, {vr(40,2)}",
      f"v_pk_add_f32 {vr(30,2)}, {vr(30,2)}, {vr(38,2)}", f"v_pk_add_f32 {vr(28,2)}, {vr(28,2)}, {vr(36,2)}")
    a(f"v_mul_f32 v30, {f32(1/640)}, v30", f"v_mul_f32 v31, {f32(1/640)}, v31", "v_fma_f32 v31, -v30, v30, v31", "v_max_f32 v31, 0, v31",
      f"v_add_f32 v31, {f32(1e-5)}, v31", "v_rsq_f32 v31, v31", "v_fma_f32 v28, -v30, v24, v28", "v_fma_f32 v29, -v30, v25, v29",
      f"v_mul_f32 v28, {f32(-1.4426950408889634)}, v28", "v_mul_f32 v28, v28, v31", "v_exp_f32 v28, v28", "v_mul_f32 v29, v29, v31",
      "v_add_f32 v28, 1.0, v28", "v_rcp_f32 v28, v28", "s_nop 0", "v_mul_f32 v28, v28, v29", "s_nop 1",
      f"v_mov_b32_dpp v29, v28 quad_perm:[1,0,3,2] {DPP}")
    a.execm(0x5555555555555555)
    a("v_cvt_pk_bf16_f32 v28, v28, v29", "v_min_u32 v28, -2, v28", f"buffer_store_dword v28, v18, {srd(rWS)}, 0 offen sc1")
    a("s_branch L_end")

    a.label("L_roleC")
    mksrd(rW1, 20, 1536*1280); mksrd(rOUT, 22, 2560)
    a(f"v_lshrrev_b32 v11, 1, v{vL}", "v_and_b32 v12, 0x13, v11", f"v_bfe_u32 v13, v11, 2, 1", "v_lshl_add_u32 v12, v13, 3, v12",
      f"v_bfe_u32 v13, v11, 3, 1", "v_lshl_add_u32 v12, v13, 2, v12", "v_mul_u32_u24 v11, 1280, v12", f"v_and_b32 v12, 1, v{vL}", "v_lshl_add_u32 v11, v12, 4, v11")
    a(f"s_mul_i32 s{sOFF}, s{sW}, {384*1280}", f"s_lshl_b32 s{sT0}, s{sRole}, 5", f"s_add_u32 s{sOFF}, s{sOFF}, s{sT0}", f"s_mul_i32 s{sT1}, s{sW}, 12288", f"s_add_u32 s{sT1}, s{sT1}, {L_W}",
      f"s_mov_b32 s{sT2}, s{sT1}")
    for q in range(12):
        a(f"s_mov_b32 m0, s{sT2}", f"s_add_u32 s{sT2}, s{sT2}, 1024", f"buffer_load_dwordx4 v11, {srd(rW1)}, s{sOFF} offen nt lds", f"s_add_u32 s{sOFF}, s{sOFF}, {32*1280}")
    a(f"v_and_b32 v12, 1, v{vG}", f"v_lshl_add_u32 v11, v12, 2, v{vRR}", f"v_lshrrev_b32 v12, 1, v{vG}", "v_lshl_add_u32 v11, v12, 4, v11",
      "v_lshlrev_b32 v11, 5, v11", f"v_lshl_add_u32 v11, v{vCC}, 3, v11", f"v_add_u32 v13, s{sT1}, v11")
    a(f"v_bfe_u32 v11, v{vL}, 3, 1", "v_mul_u32_u24 v11, 1280, v11", f"v_and_b32 v12, 7, v{vL}", "v_lshl_add_u32 v11, v12, 2, v11", f"v_add_u32 v18, s{sT0}, v11")
    a(f"v_lshlrev_b32 v14, 7, v{vCC}", f"v_and_b32 v12, 1, v{vRR}", "v_lshl_add_u32 v14, v12, 6, v14", f"v_lshl_add_u32 v14, v{vG}, 4, v14")
    a(f"s_mul_i32 s{sT0}, s{sW}, 1536", f"s_add_u32 s{sT0}, s{sT0}, {WS_HB}", f"v_add_u32 v15, s{sT0}, v14")
    a(f"s_lshr_b32 s{sT0}, s{sRole}, 1", f"s_lshl_b32 s{sT0}, s{sT0}, 10", f"s_lshl_b32 s{sT2}, s{sW}, 9", f"s_add_u32 s{sT0}, s{sT0}, s{sT2}",
      f"s_add_u32 s{sT0}, s{sT0}, {WS_YB}", f"v_add_u32 v14, s{sT0}, v14")
    a(f"s_lshl_b32 s{sT0}, s{sW}, 7", f"s_add_u32 s{sT0}, s{sT0}, {L_T}", f"v_lshl_add_u32 v16, v{vL}, 2, s{sT0}", f"v_lshlrev_b32 v17, 3, v{vL}", f"v_add_u32 v17, {L_T}, v17")
    a(f"s_and_b32 s{sT0}, s{sRole}, 1", f"s_lshl_b32 s{sT0}, s{sT0}, 1", f"v_bfe_u32 v11, v{vL}, 3, 1", f"v_add_u32 v11, s{sT0}, v11",
      f"v_cmp_eq_u32 vcc, v11, v{vG}", "v_mov_b32 v12, 0x3f803f80", "s_nop 0", "v_cndmask_b32 v12, 0, v12, vcc")
    for j in range(4): a(f"v_and_b32 v{20+j}, v12, v{vM+j}")
    for k in range(12): a(f"v_mov_b32 v{32+k}, 0")
    a("v_mov_b32 v19, 0")
    a("s_waitcnt vmcnt(0)")
    for q in range(12):
        for hf in range(2): a(f"ds_read_b64_tr_b16 {vr(W+4*q+2*hf,2)}, v13 offset:{q*1024 + hf*256}")
    a("s_waitcnt lgkmcnt(0)")
    stamp(9)
    a(f"s_cmp_ge_u32 s{sW}, 2", "s_cbranch_scc1 L_cnores")
    poll([f"buffer_load_dwordx4 {vr(32,4)}, v14, {srd(rWS)}, 0 offen sc1"], list(range(32, 36)), HALF)
    a(f"v_mfma_f32_16x16x32_bf16 {vr(D,4)}, {vr(32,4)}, {vr(20,4)}, 0", "s_nop 7",
      f"v_add_f32 v19, v{D}, v{D+1}", f"v_add_f32 v11, v{D+2}, v{D+3}", "v_add_f32 v19, v19, v11")
    a.label("L_cnores")
    poll([f"buffer_load_dwordx4 {vr(32+4*ld,4)}, v15, {srd(rWS)}, 0 offen offset:{ld*512} sc1" for ld in range(3)], list(range(32, 44)), HALF)
    if diag: a("s_memrealtime s[82:83]")
    for ld in range(3):
        for s_ in range(4):
            d = vr(D+4*s_, 4)
            a(f"v_mfma_f32_16x16x32_bf16 {d}, {vr(32+4*ld,4)}, {vr(W+16*ld+4*s_,4)}, {'0' if ld == 0 else d}")
    a.execm(LO32)
    a("s_nop 2", f"v_add_f32 v19, v19, v{D}", f"v_add_f32 v19, v19, v{D+5}", f"v_add_f32 v19, v19, v{D+10}", f"v_add_f32 v19, v19, v{D+15}")
    a("ds_write_b32 v16, v19")
    a.execm(ALL)
    a("s_waitcnt lgkmcnt(0)", "s_barrier")
    a(f"s_cmp_lg_u32 s{sW}, 0", "s_cbranch_scc1 L_end")
    a.execm(0xFFFF)
    a(f"ds_read2_b64 {vr(32,4)}, v17 offset0:0 offset1:16", f"ds_read2_b64 {vr(36,4)}, v17 offset0:32 offset1:48")
    a("s_waitcnt lgkmcnt(1)", f"v_pk_add_f32 {vr(32,2)}, {vr(32,2)}, {vr(34,2)}",
      "s_waitcnt lgkmcnt(0)", f"v_pk_add_f32 {vr(36,2)}, {vr(36,2)}, {vr(38,2)}", f"v_pk_add_f32 {vr(32,2)}, {vr(32,2)}, {vr(36,2)}",
      "v_cvt_pk_bf16_f32 v32, v32, v33", f"buffer_store_dword v32, v18, {srd(rOUT)}, 0 offen")
    a.label("L_end")
    if diag:
        a("s_memrealtime s[4:5]", "s_waitcnt vmcnt(0)", "s_memrealtime s[6:7]", "s_getreg_b32 s101, hwreg(HW_REG_XCC_ID)", "s_waitcnt lgkmcnt(0)")
        a("s_mov_b64 exec, 1", f"s_lshl_b32 s{sT0}, s2, 2", f"s_add_u32 s{sT0}, s{sT0}, s{sW}", f"s_lshl_b32 s{sT0}, s{sT0}, 6", f"s_add_u32 s{sT0}, s{sT0}, {WS_DIAG}",
          f"v_mov_b32 v7, s{sT0}")
        src = [80+2*i for i in range(10)] + [4, 6, 100, 101, sCNT, sTK]
        for k in range(16): a(f"v_mov_b32 v{32+k}, s{src[k]}")
        for k in range(4): a(f"buffer_store_dwordx4 {vr(32+4*k,4)}, v7, {srd(rWS)}, 0 offen offset:{16*k}")
    a.label("L_done")
    a("s_endpgm")

    out = HDR + f"; @launch grid=(256,1,1) block=(256,1,1) lds={LDS_BYTES}\n"
    out += '.amdgcn_target "amdgcn-amd-amdhsa--gfx950"\n.text\n' + f".globl {KN}\n.p2align 8\n.type {KN},@function\n"
    out += "\n".join(a.L) + "\n"
    out += f""".section .rodata,"a"
.p2align 6
.amdhsa_kernel {KN}
  .amdhsa_next_free_vgpr 296
  .amdhsa_next_free_sgpr 102
  .amdhsa_accum_offset 256
  .amdhsa_group_segment_fixed_size 0
  .amdhsa_kernarg_size 96
  .amdhsa_user_sgpr_count 2
  .amdhsa_user_sgpr_kernarg_segment_ptr 1
  .amdhsa_system_sgpr_workgroup_id_x 1
.end_amdhsa_kernel
"""
    open(path, "w").write(out)

if __name__ == "__main__":
    gen(sys.argv[1] if len(sys.argv) > 1 else "sequential_preLN__mha_block_cached__glu_gated_glu__decode.s")
```
